```python
import torch

def _softmax(x, axis=-1):
    return torch.softmax(x, dim=axis)
def _gelu(x):
    return torch.nn.functional.gelu(x, approximate="tanh")
def _silu(x):
    return torch.nn.functional.silu(x)
def _sigmoid(x):
    return torch.sigmoid(x)
def _layernorm(x, axis=-1, eps=1e-5):
    m = x.mean(dim=axis, keepdim=True)
    v = x.var(dim=axis, keepdim=True, unbiased=False)
    return (x - m) / torch.sqrt(v + eps)
def _scatter_add(tgt, idx, src, axis=0):
    return tgt.clone().index_add_(axis, idx, src)
def _segment_sum(src, seg, n):
    out = torch.zeros((n,) + src.shape[1:], dtype=src.dtype)
    return out.index_add_(0, seg, src)
def _pad(x, pw):
    flat = tuple(v for pair in reversed(pw) for v in pair)
    return torch.nn.functional.pad(x, flat)

kernel_name = 'parallel_sum__sliding_block_cached__mixer_token_mlp__decode'

def setup_inputs():

    _w = (lambda a: (lambda t: t.to(torch.bfloat16) if t.is_floating_point() else t)(torch.as_tensor(a)))
    def _A_setup():
        B, Sq, D = 1, 1, 448
        Hq, Hkv, Sk, Dh = 16, 8, 32768, 256
        assert Hq % Hkv == 0, (Hq, Hkv)
        return {
            "x": _w((lambda *s: torch.randn(*s, dtype=torch.bfloat16) * 0.05)(B, Sq, D)),
            "k_cache": _w((lambda *s: torch.randn(*s, dtype=torch.bfloat16) * 1.6)(B, Hkv, Sk, Dh)),
            "v_cache": _w((lambda *s: torch.randn(*s, dtype=torch.bfloat16) * 0.8)(B, Hkv, Sk, Dh)),
            "wq": _w((lambda *s: torch.randn(*s, dtype=torch.bfloat16) * 1.6)(D, Hq * Dh) * (D ** -0.5)),
            "wo": _w((lambda *s: torch.randn(*s, dtype=torch.bfloat16) * 0.8)(Hq * Dh, D) * ((Hq * Dh) ** -0.5)),
        }
    _A_in = _A_setup()

    def _B_setup():
        B, S, D, F = 1, 1, 448, 1792
        return {
            "x": _w((lambda *s: torch.randn(*s, dtype=torch.bfloat16) * 0.05)(B, S, D)),
            "w1": _w((lambda *s: torch.randn(*s, dtype=torch.bfloat16) * 0.4)(S, F) * (S ** -0.5)),
            "b1": _w((lambda *s: torch.randn(*s, dtype=torch.bfloat16) * 0.4)(F) * 0.02),
            "w2": _w((lambda *s: torch.randn(*s, dtype=torch.bfloat16) * 0.4)(F, S) * (F ** -0.5)),
            "b2": _w((lambda *s: torch.randn(*s, dtype=torch.bfloat16) * 0.4)(S) * 0.02),
        }
    _B_in = _B_setup()

    return {
        "A_x": _A_in["x"],
        "A_k_cache": _A_in["k_cache"],
        "A_v_cache": _A_in["v_cache"],
        "A_wq": _A_in["wq"],
        "A_wo": _A_in["wo"],
        "B_x": _B_in["x"],
        "B_w1": _B_in["w1"],
        "B_b1": _B_in["b1"],
        "B_w2": _B_in["w2"],
        "B_b2": _B_in["b2"],
    }

def reference(A_x, A_k_cache, A_v_cache, A_wq, A_wo, B_x, B_w1, B_b1, B_w2, B_b2):
    def _A_ref(x, k_cache, v_cache, wq, wo):
        B, Sq, D = x.shape
        Hq, Dh = 16, 256
        Hkv, Sk = k_cache.shape[1], k_cache.shape[2]
        W = min(4096, max(256, Sk // 4))
        rep = Hq // Hkv
        q = (lambda x, *d: x.permute(*d))((x @ wq).reshape(B, Sq, Hq, Dh), 0, 2, 1, 3)
        k = (lambda x, n, axis: torch.repeat_interleave(x, n, dim=axis))(k_cache[:, :, Sk - W:, :], rep, axis=1)
        v = (lambda x, n, axis: torch.repeat_interleave(x, n, dim=axis))(v_cache[:, :, Sk - W:, :], rep, axis=1)
        scores = torch.einsum("bhqd,bhkd->bhqk", q, k) * (Dh ** -0.5)
        p = _softmax(scores, axis=-1)
        o = torch.einsum("bhqk,bhkd->bhqd", p, v)
        return (lambda x, *d: x.permute(*d))(o, 0, 2, 1, 3).reshape(B, Sq, Hq * Dh) @ wo

    def _B_ref(x, w1, b1, w2, b2):
        B, S, D = x.shape
        h = _layernorm(x, axis=-1)
        u = torch.einsum("bsd,sf->bdf", h, w1) + b1
        u = _gelu(u)
        y = torch.einsum("bdf,fs->bds", u, w2) + b2
        return (lambda x, *d: x.permute(*d))(y, 0, 2, 1)

    x = A_x
    xn = _layernorm(x, axis=-1)
    return x + _A_ref(xn, A_k_cache, A_v_cache, A_wq, A_wo) + _B_ref(xn, B_w1, B_b1, B_w2, B_b2)
```

```python
import sys

out = []
def E(s=""):
    out.append(s)

WS_Q = 0x0
WS_PART = 0x10000
WS_M = 0x100000
WS_L = 0x101000
WS_OP = 0x200000
WS_SIZE = 0x20000000

def kernel_begin(name):
    E(f".globl {name}")
    E(".p2align 8")
    E(f".type {name},@function")
    E(f"{name}:")

def kd(name, vgpr, sgpr=96):
    acc = (vgpr + 3) // 4 * 4
    E(f".amdhsa_kernel {name}")
    E(f"  .amdhsa_next_free_vgpr {vgpr}")
    E(f"  .amdhsa_next_free_sgpr {sgpr}")
    E(f"  .amdhsa_accum_offset {acc}")
    E("  .amdhsa_group_segment_fixed_size 0")
    E("  .amdhsa_kernarg_size 104")
    E("  .amdhsa_user_sgpr_count 2")
    E("  .amdhsa_user_sgpr_kernarg_segment_ptr 1")
    E("  .amdhsa_system_sgpr_workgroup_id_x 1")
    E(".end_amdhsa_kernel")

def srd(d, b, nbytes):
    E(f"  s_mov_b32 s{d}, s{b}")
    E(f"  s_and_b32 s{d+1}, s{b+1}, 0xffff")
    E(f"  s_mov_b32 s{d+2}, {nbytes:#x}")
    E(f"  s_mov_b32 s{d+3}, 0x00020000")

def bf16r(v):
    E(f"  v_cvt_pk_bf16_f32 v{v}, v{v}, v{v}")
    E(f"  v_lshlrev_b32 v{v}, 16, v{v}")

def wave_reduce(op, v, s0):
    for m in ("quad_perm:[1,0,3,2]", "quad_perm:[2,3,0,1]", "row_ror:4", "row_ror:8"):
        E("  s_nop 1")
        E(f"  {op} v{v}, v{v}, v{v} {m} row_mask:0xf bank_mask:0xf")
    E("  s_nop 1")
    for k in range(4):
        E(f"  v_readlane_b32 s{s0+k}, v{v}, {16*k}")
    E("  s_nop 1")
    E(f"  v_mov_b32 v{v}, s{s0}")
    for k in range(1, 4):
        E(f"  {op} v{v}, s{s0+k}, v{v}")

def layernorm(x, t, s0):
    E(f"  v_mov_b32 v{t}, v{x}")
    for j in range(1, 7):
        E(f"  v_add_f32 v{t}, v{t}, v{x+j}")
    wave_reduce("v_add_f32", t, s0)
    E(f"  v_mul_f32 v{t}, {1.0/448!r}, v{t}")
    E(f"  v_mov_b32 v{t+1}, 0")
    for j in range(7):
        E(f"  v_sub_f32 v{t+2}, v{x+j}, v{t}")
        E(f"  v_fmac_f32 v{t+1}, v{t+2}, v{t+2}")
    wave_reduce("v_add_f32", t+1, s0)
    E(f"  v_mul_f32 v{t+1}, {1.0/448!r}, v{t+1}")
    bf16r(t)
    bf16r(t+1)
    E(f"  v_add_f32 v{t+1}, {1e-5!r}, v{t+1}")
    bf16r(t+1)
    E(f"  v_sqrt_f32 v{t+1}, v{t+1}")
    E("  s_nop 0")
    bf16r(t+1)
    E(f"  v_rcp_f32 v{t+1}, v{t+1}")
    E("  s_nop 0")
    for j in range(7):
        E(f"  v_sub_f32 v{x+j}, v{x+j}, v{t}")
        bf16r(x+j)
        E(f"  v_mul_f32 v{x+j}, v{x+j}, v{t+1}")
        bf16r(x+j)

def load_x(x, vtmp, srd_x):
    E(f"  v_and_b32 v{vtmp}, 63, v0")
    E(f"  v_lshlrev_b32 v{vtmp}, 1, v{vtmp}")
    for j in range(7):
        E(f"  buffer_load_ushort v{x+j}, v{vtmp}, s[{srd_x}:{srd_x+3}], 0 offen offset:{128*j}")
    E("  s_waitcnt vmcnt(0)")
    for j in range(7):
        E(f"  v_lshlrev_b32 v{x+j}, 16, v{x+j}")

E("; @launch kernel=k1_qproj_kernel grid=(256,1,1) block=(256,1,1) lds=16384")
E("; @launch kernel=k2_attn_kernel grid=(256,1,1) block=(256,1,1) lds=40960")
E("; @launch kernel=k3_oproj_kernel grid=(256,1,1) block=(256,1,1) lds=16384")
E("; @launch kernel=k4_final_kernel grid=(28,1,1) block=(256,1,1) lds=4096")
E('.amdgcn_target "amdgcn-amd-amdhsa--gfx950"')
E(".text")

kernel_begin("k1_qproj_kernel")
E("  s_cmp_ge_u32 s2, 256")
E("  s_cbranch_scc1 K1_END")
E("  s_load_dwordx2 s[4:5], s[0:1], 0")
E("  s_load_dwordx2 s[6:7], s[0:1], 24")
E("  s_load_dwordx2 s[8:9], s[0:1], 96")
E("  s_waitcnt lgkmcnt(0)")
srd(12, 4, 896)
srd(16, 6, 448*8192)
srd(20, 8, WS_SIZE)
X = 10
load_x(X, 1, 12)
layernorm(X, 2, 24)
E("  v_and_b32 v1, 63, v0")
E("  v_lshlrev_b32 v1, 2, v1")
for j in range(7):
    E(f"  ds_write_b32 v1, v{X+j} offset:{256*j}")
E("  v_mov_b32 v2, 0")
E(f"  ds_write_b32 v1, v2 offset:{256*7}")
E("  s_waitcnt lgkmcnt(0)")
E("  s_barrier")
E("  v_lshrrev_b32 v1, 1, v0")
E("  v_and_b32 v2, 1, v0")
E("  s_lshl_b32 s3, s2, 5")
E("  v_lshlrev_b32 v3, 13, v1")
E("  v_lshl_add_u32 v3, v2, 4, v3")
E("  v_add_u32 v3, s3, v3")
E("  v_lshlrev_b32 v4, 2, v1")
for i in range(4):
    E(f"  s_mov_b32 s28, {i*128*8192}")
    E(f"  buffer_load_dwordx4 v[{20+4*i}:{23+4*i}], v3, s[16:19], s28 offen")
    E(f"  ds_read_b32 v{36+i}, v4 offset:{512*i}")
for e in range(8):
    E(f"  v_mov_b32 v{40+e}, 0")
E("  s_waitcnt vmcnt(0) lgkmcnt(0)")
for i in range(4):
    for p in range(4):
        E(f"  v_lshlrev_b32 v50, 16, v{20+4*i+p}")
        E(f"  v_and_b32 v51, 0xffff0000, v{20+4*i+p}")
        E(f"  v_fmac_f32 v{40+2*p}, v{36+i}, v50")
        E(f"  v_fmac_f32 v{40+2*p+1}, v{36+i}, v51")
E("  v_lshlrev_b32 v4, 6, v1")
E("  v_lshl_add_u32 v4, v2, 5, v4")
E("  ds_write_b128 v4, v[40:43] offset:4096")
E("  ds_write_b128 v4, v[44:47] offset:4112")
E("  s_waitcnt lgkmcnt(0)")
E("  s_barrier")
E("  v_and_b32 v1, 15, v0")
E("  v_lshrrev_b32 v2, 4, v0")
E("  v_lshlrev_b32 v4, 9, v2")
E("  v_lshl_add_u32 v4, v1, 2, v4")
for k in range(8):
    E(f"  ds_read_b32 v{40+k}, v4 offset:{4096+64*k}")
E("  s_waitcnt lgkmcnt(0)")
for k in range(1, 8):
    E(f"  v_add_f32 v40, v40, v{40+k}")
E("  v_lshlrev_b32 v4, 2, v0")
E("  ds_write_b32 v4, v40 offset:12288")
E("  s_waitcnt lgkmcnt(0)")
E("  s_barrier")
E("  v_cmp_gt_u32 vcc, 16, v0")
E("  s_and_saveexec_b64 s[30:31], vcc")
E("  s_cbranch_execz K1_END")
E("  v_lshlrev_b32 v4, 2, v0")
for k in range(16):
    E(f"  ds_read_b32 v{40+k}, v4 offset:{12288+64*k}")
E("  s_waitcnt lgkmcnt(0)")
for k in range(1, 16):
    E(f"  v_add_f32 v40, v40, v{40+k}")
E("  v_cvt_pk_bf16_f32 v40, v40, v40")
E("  s_lshl_b32 s3, s2, 5")
E("  v_lshlrev_b32 v4, 1, v0")
E("  v_add_u32 v4, s3, v4")
E(f"  buffer_store_short v40, v4, s[20:23], 0 offen offset:{WS_Q}")
E("  s_waitcnt vmcnt(0)")
E("K1_END:")
E("  s_endpgm")

kernel_begin("k2_attn_kernel")
E("  s_cmp_ge_u32 s2, 256")
E("  s_cbranch_scc1 K2_END")
E("  s_load_dwordx2 s[4:5], s[0:1], 8")
E("  s_load_dwordx2 s[6:7], s[0:1], 16")
E("  s_load_dwordx2 s[8:9], s[0:1], 96")
E("  s_waitcnt lgkmcnt(0)")
srd(12, 4, 0x8000000)
srd(16, 6, 0x8000000)
srd(20, 8, WS_SIZE)
E("  s_lshr_b32 s24, s2, 5")
E("  s_and_b32 s25, s2, 31")
E("  s_lshl_b32 s26, s24, 24")
E("  s_lshl_b32 s27, s25, 16")
E("  s_add_u32 s26, s26, s27")
E(f"  s_add_u32 s26, s26, {28672*512}")
E("  v_lshrrev_b32 v1, 6, v0")
E("  v_and_b32 v2, 63, v0")
E("  v_lshlrev_b32 v3, 14, v1")
E("  v_lshl_add_u32 v3, v2, 4, v3")
KR = 64
VR = 128
for i in range(16):
    E(f"  s_add_u32 s60, s26, {1024*i}")
    E(f"  buffer_load_dwordx4 v[{KR+4*i}:{KR+4*i+3}], v3, s[12:15], s60 offen")
E("  v_and_b32 v4, 31, v2")
E("  v_lshlrev_b32 v4, 4, v4")
E("  s_lshl_b32 s27, s24, 10")
E(f"  s_add_u32 s27, s27, {WS_Q}")
E("  buffer_load_dwordx4 v[8:11], v4, s[20:23], s27 offen")
E("  buffer_load_dwordx4 v[12:15], v4, s[20:23], s27 offen offset:512")
for i in range(16):
    E(f"  s_add_u32 s60, s26, {1024*i}")
    E(f"  buffer_load_dwordx4 v[{VR+4*i}:{VR+4*i+3}], v3, s[16:19], s60 offen")
E("  s_waitcnt vmcnt(16)")
for i in range(16):
    for h in range(2):
        d = 16 + h*16 + i
        E(f"  v_mov_b32 v{d}, 0")
        for p in range(4):
            E(f"  v_dot2_f32_bf16 v{d}, v{KR+4*i+p}, v{8+4*h+p}, v{d}")
E("  v_mul_u32_u24 v5, 9216, v1")
E("  v_mul_u32_u24 v6, 144, v2")
E("  v_add_u32 v6, v5, v6")
E("  s_nop 2")
for k in range(8):
    E(f"  ds_write_b128 v6, v[{16+4*k}:{19+4*k}] offset:{16*k}")
E("  s_waitcnt lgkmcnt(0)")
E("  v_lshrrev_b32 v7, 5, v2")
E("  v_mul_u32_u24 v7, 4608, v7")
E("  v_and_b32 v6, 31, v2")
E("  v_lshl_add_u32 v6, v6, 2, v7")
E("  v_add_u32 v6, v5, v6")
for j in range(32):
    E(f"  ds_read_b32 v{16+j}, v6 offset:{144*j}")
E("  s_waitcnt lgkmcnt(0)")
for j in range(1, 32):
    E(f"  v_add_f32 v16, v16, v{16+j}")
import math
E(f"  v_mul_f32 v16, {0.0625*math.log2(math.e)!r}, v16")
E("  v_mov_b32 v17, v16")
for m in ("quad_perm:[1,0,3,2]", "quad_perm:[2,3,0,1]", "row_ror:4", "row_ror:8"):
    E("  s_nop 1")
    E(f"  v_max_f32 v17, v17, v17 {m} row_mask:0xf bank_mask:0xf")
E("  s_nop 1")
for k in range(4):
    E(f"  v_readlane_b32 s{28+k}, v17, {16*k}")
E("  s_nop 1")
E("  v_mov_b32 v18, s28")
E("  v_max_f32 v18, s30, v18")
E("  v_mov_b32 v19, s29")
E("  v_max_f32 v19, s31, v19")
E("  v_lshlrev_b32 v6, 3, v1")
E("  ds_write_b64 v6, v[18:19] offset:36864")
E("  s_waitcnt lgkmcnt(0)")
E("  s_barrier")
E("  v_mov_b32 v6, 0")
E("  ds_read_b128 v[20:23], v6 offset:36864")
E("  ds_read_b128 v[24:27], v6 offset:36880")
E("  s_waitcnt lgkmcnt(0)")
E("  v_max_f32 v18, v20, v22")
E("  v_max_f32 v18, v18, v24")
E("  v_max_f32 v18, v18, v26")
E("  v_max_f32 v19, v21, v23")
E("  v_max_f32 v19, v19, v25")
E("  v_max_f32 v19, v19, v27")
E("  v_mov_b32 v8, v18")
E("  v_mov_b32 v9, v19")
E("  v_and_b32 v6, 16, v2")
E("  v_cmp_eq_u32 vcc, 0, v6")
E("  s_nop 1")
E("  v_cndmask_b32 v17, v19, v18, vcc")
E("  v_sub_f32 v16, v16, v17")
E("  v_exp_f32 v16, v16")
E("  s_nop 0")
E("  v_mov_b32 v17, v16")
for m in ("quad_perm:[1,0,3,2]", "quad_perm:[2,3,0,1]", "row_ror:4", "row_ror:8"):
    E("  s_nop 1")
    E(f"  v_add_f32 v17, v17, v17 {m} row_mask:0xf bank_mask:0xf")
E("  s_nop 1")
for k in range(4):
    E(f"  v_readlane_b32 s{28+k}, v17, {16*k}")
E("  s_nop 1")
E("  v_mov_b32 v20, s28")
E("  v_add_f32 v20, s30, v20")
E("  v_mov_b32 v21, s29")
E("  v_add_f32 v21, s31, v21")
E("  v_lshlrev_b32 v6, 3, v1")
E("  ds_write_b64 v6, v[20:21] offset:36928")
E("  v_lshl_add_u32 v6, v2, 2, v5")
E("  ds_write_b32 v6, v16")
E("  s_waitcnt lgkmcnt(0)")
E("  v_lshrrev_b32 v7, 5, v2")
E("  v_lshl_add_u32 v6, v7, 7, v5")
for k in range(8):
    E(f"  ds_read_b128 v[{16+4*k}:{19+4*k}], v6 offset:{16*k}")
for k in range(16):
    E(f"  v_mov_b32 v{48+k}, 0")
E("  s_waitcnt vmcnt(0) lgkmcnt(0)")
for i in range(16):
    for p in range(4):
        E(f"  v_lshlrev_b32 v6, 16, v{VR+4*i+p}")
        E(f"  v_and_b32 v7, 0xffff0000, v{VR+4*i+p}")
        for h in range(2):
            E(f"  v_fmac_f32 v{48+8*h+2*p}, v{16+16*h+i}, v6")
            E(f"  v_fmac_f32 v{48+8*h+2*p+1}, v{16+16*h+i}, v7")
E("  s_barrier")
E("  v_lshrrev_b32 v7, 5, v0")
E("  v_lshlrev_b32 v7, 11, v7")
E("  v_and_b32 v6, 31, v2")
E("  v_lshl_add_u32 v6, v6, 5, v7")
for h in range(2):
    E(f"  ds_write_b128 v6, v[{48+8*h}:{51+8*h}] offset:{1024*h}")
    E(f"  ds_write_b128 v6, v[{52+8*h}:{55+8*h}] offset:{1024*h+16}")
E("  s_waitcnt lgkmcnt(0)")
E("  s_barrier")
E("  v_lshlrev_b32 v6, 2, v0")
for h in range(2):
    for k in range(8):
        E(f"  ds_read_b32 v{16+8*h+k}, v6 offset:{2048*k+1024*h}")
E("  v_mov_b32 v7, 0")
E("  ds_read_b128 v[32:35], v7 offset:36928")
E("  ds_read_b128 v[36:39], v7 offset:36944")
E("  s_waitcnt lgkmcnt(0)")
for h in range(2):
    for k in range(1, 8):
        E(f"  v_add_f32 v{16+8*h}, v{16+8*h}, v{16+8*h+k}")
E("  v_add_f32 v32, v32, v34")
E("  v_add_f32 v32, v32, v36")
E("  v_add_f32 v32, v32, v38")
E("  v_add_f32 v33, v33, v35")
E("  v_add_f32 v33, v33, v37")
E("  v_add_f32 v33, v33, v39")
E("  s_lshl_b32 s27, s24, 16")
E("  s_lshl_b32 s28, s25, 10")
E("  s_add_u32 s27, s27, s28")
E(f"  s_add_u32 s27, s27, {WS_PART}")
E("  s_add_u32 s28, s27, 32768")
E("  buffer_store_dword v16, v6, s[20:23], s27 offen")
E("  buffer_store_dword v24, v6, s[20:23], s28 offen")
E("  v_cmp_eq_u32 vcc, 0, v0")
E("  s_and_saveexec_b64 s[30:31], vcc")
E("  s_lshl_b32 s27, s24, 8")
E("  s_lshl_b32 s28, s25, 2")
E("  s_add_u32 s27, s27, s28")
E("  v_mov_b32 v6, s27")
E(f"  buffer_store_dword v18, v6, s[20:23], 0 offen offset:{0}" if False else f"  s_add_u32 s28, s27, {WS_M}")
E("  v_mov_b32 v6, s28")
E("  buffer_store_dword v8, v6, s[20:23], 0 offen")
E("  buffer_store_dword v9, v6, s[20:23], 0 offen offset:128")
E(f"  s_add_u32 s28, s27, {WS_L}")
E("  v_mov_b32 v6, s28")
E("  buffer_store_dword v32, v6, s[20:23], 0 offen")
E("  buffer_store_dword v33, v6, s[20:23], 0 offen offset:128")
E("  s_waitcnt vmcnt(0)")
E("K2_END:")
E("  s_endpgm")

kernel_begin("k3_oproj_kernel")
E("  s_cmp_ge_u32 s2, 256")
E("  s_cbranch_scc1 K3_END")
E("  s_load_dwordx2 s[4:5], s[0:1], 0")
E("  s_load_dwordx2 s[6:7], s[0:1], 32")
E("  s_load_dwordx2 s[8:9], s[0:1], 96")
E("  s_load_dwordx2 s[36:37], s[0:1], 48")
E("  s_load_dwordx2 s[38:39], s[0:1], 56")
E("  s_load_dwordx2 s[40:41], s[0:1], 64")
E("  s_waitcnt lgkmcnt(0)")
srd(12, 4, 896)
srd(16, 6, 4096*896)
srd(20, 8, WS_SIZE)
srd(44, 36, 3584)
srd(48, 38, 3584)
srd(52, 40, 3584)
E("  v_cvt_f32_u32 v1, v0")
E(f"  v_mul_f32 v1, {1.0/56!r}, v1")
E("  v_add_f32 v1, 0x3a000000, v1")
E("  v_cvt_u32_f32 v1, v1")
E("  v_mul_u32_u24 v2, 56, v1")
E("  v_sub_u32 v2, v0, v2")
E("  s_lshl_b32 s3, s2, 4")
E("  v_lshlrev_b32 v3, 2, v1")
E("  v_add_u32 v3, s3, v3")
E("  v_mul_u32_u24 v3, 896, v3")
E("  v_lshl_add_u32 v3, v2, 4, v3")
for k in range(4):
    E(f"  buffer_load_dwordx4 v[{64+4*k}:{67+4*k}], v3, s[16:19], 0 offen offset:{896*k}")
E("  s_lshr_b32 s24, s2, 4")
E("  s_and_b32 s25, s2, 15")
E("  s_lshl_b32 s25, s25, 6")
E("  s_lshl_b32 s26, s24, 7")
E(f"  s_add_u32 s27, s26, {WS_M}")
E(f"  s_add_u32 s28, s26, {WS_L}")
E("  v_mov_b32 v4, 0")
for k in range(8):
    E(f"  buffer_load_dwordx4 v[{96+4*k}:{99+4*k}], v4, s[20:23], s27 offen offset:{16*k}")
for k in range(8):
    E(f"  buffer_load_dwordx4 v[{128+4*k}:{131+4*k}], v4, s[20:23], s28 offen offset:{16*k}")
E("  v_lshrrev_b32 v5, 4, v0")
E("  v_lshlrev_b32 v5, 10, v5")
E("  v_and_b32 v6, 15, v0")
E("  v_lshl_add_u32 v5, v6, 2, v5")
E("  s_lshl_b32 s26, s24, 15")
E("  s_add_u32 s26, s26, s25")
E(f"  s_add_u32 s26, s26, {WS_PART}")
E("  s_add_u32 s29, s26, 16384")
E("  buffer_load_dword v8, v5, s[20:23], s26 offen")
E("  buffer_load_dword v9, v5, s[20:23], s29 offen")
X = 10
load_x(X, 1+60, 12)
layernorm(X, 17, 56)
layernorm(X, 17, 56)
E("  v_and_b32 v60, 63, v0")
E("  v_lshlrev_b32 v60, 2, v60")
for j in range(7):
    E(f"  ds_write_b32 v60, v{X+j} offset:{256*j}")
E("  v_max_f32 v20, v96, v97")
for k in range(2, 32):
    E(f"  v_max_f32 v20, v20, v{96+k}")
E("  v_mov_b32 v21, 0")
for k in range(32):
    E(f"  v_sub_f32 v{96+k}, v{96+k}, v20")
    E(f"  v_exp_f32 v{96+k}, v{96+k}")
    E("  s_nop 0")
    E(f"  v_fmac_f32 v21, v{96+k}, v{128+k}")
E("  v_rcp_f32 v21, v21")
E("  s_nop 0")
E("  v_lshrrev_b32 v5, 4, v0")
E("  v_lshlrev_b32 v5, 2, v5")
E("  buffer_load_dword v22, v5, s[20:23], s27 offen")
E("  buffer_load_dword v23, v5, s[20:23], s27 offen offset:64")
E("  s_waitcnt vmcnt(0)")
E("  v_sub_f32 v22, v22, v20")
E("  v_exp_f32 v22, v22")
E("  v_sub_f32 v23, v23, v20")
E("  v_exp_f32 v23, v23")
E("  s_nop 0")
E("  v_mul_f32 v8, v8, v22")
E("  v_fmac_f32 v8, v9, v23")
E("  v_mul_f32 v8, v8, v21")
E("  v_lshlrev_b32 v5, 2, v0")
E("  ds_write_b32 v5, v8 offset:2048")
E("  s_waitcnt lgkmcnt(0)")
E("  s_barrier")
E("  v_lshlrev_b32 v5, 4, v1")
for k in range(4):
    E(f"  v_mov_b32 v{24+k}, 0")
for c in range(16):
    E(f"  ds_read_b128 v[28:31], v5 offset:{2048+64*c}")
    E("  s_waitcnt lgkmcnt(0)")
    for k in range(4):
        E(f"  v_add_f32 v{24+k}, v{24+k}, v{28+k}")
for k in range(4):
    bf16r(24+k)
for e in range(8):
    E(f"  v_mov_b32 v{32+e}, 0")
for k in range(4):
    for p in range(4):
        E(f"  v_lshlrev_b32 v40, 16, v{64+4*k+p}")
        E(f"  v_and_b32 v41, 0xffff0000, v{64+4*k+p}")
        E(f"  v_fmac_f32 v{32+2*p}, v{24+k}, v40")
        E(f"  v_fmac_f32 v{32+2*p+1}, v{24+k}, v41")
E("  s_mul_i32 s3, s2, 7")
E("  v_add_u32 v42, s3, v1")
E("  v_lshlrev_b32 v42, 1, v42")
E("  v_lshlrev_b32 v43, 5, v2")
E("  ds_read_b128 v[44:47], v43")
E("  ds_read_b128 v[48:51], v43 offset:16")
for ff in range(2):
    E(f"  buffer_load_ushort v52, v42, s[44:47], 0 offen offset:{8*ff}")
    E(f"  buffer_load_ushort v53, v42, s[48:51], 0 offen offset:{8*ff}")
    E(f"  buffer_load_ushort v54, v42, s[52:55], 0 offen offset:{8*ff}")
    E("  s_waitcnt vmcnt(0) lgkmcnt(0)")
    E("  v_lshlrev_b32 v52, 16, v52")
    E("  v_lshlrev_b32 v53, 16, v53")
    E("  v_lshlrev_b32 v54, 16, v54")
    if ff == 1:
        E("  v_cmp_eq_u32 vcc, 3, v1")
        E("  s_nop 1")
        E("  v_cndmask_b32 v54, v54, 0, vcc")
    for e in range(8):
        u = 55
        E(f"  v_mul_f32 v{u}, v{44+e}, v52")
        bf16r(u)
        E(f"  v_add_f32 v{u}, v{u}, v53")
        bf16r(u)
        E(f"  v_mul_f32 v56, v{u}, v{u}")
        E(f"  v_mul_f32 v56, v56, v{u}")
        E(f"  v_mul_f32 v56, {0.044715!r}, v56")
        E(f"  v_add_f32 v56, v56, v{u}")
        c = math.sqrt(2/math.pi) * 2 * math.log2(math.e)
        E(f"  v_mul_f32 v56, {c!r}, v56")
        E("  v_exp_f32 v56, v56")
        E("  s_nop 0")
        E("  v_add_f32 v56, 1.0, v56")
        E("  v_rcp_f32 v56, v56")
        E("  s_nop 0")
        E("  v_sub_f32 v56, 1.0, v56")
        E(f"  v_mul_f32 v56, v56, v{u}")
        bf16r(56)
        E(f"  v_fmac_f32 v{32+e}, v56, v54")
E("  v_cmp_gt_u32 vcc, 224, v0")
E("  s_and_saveexec_b64 s[30:31], vcc")
E("  v_mul_u32_u24 v5, 1792, v1")
E("  v_lshl_add_u32 v5, v2, 5, v5")
E("  ds_write_b128 v5, v[32:35] offset:4096")
E("  ds_write_b128 v5, v[36:39] offset:4112")
E("  s_or_b64 exec, exec, s[30:31]")
E("  s_waitcnt lgkmcnt(0)")
E("  s_barrier")
for rep in range(2):
    if rep == 1:
        E("  v_cmp_gt_u32 vcc, 192, v0")
        E("  s_and_saveexec_b64 s[30:31], vcc")
    E("  v_lshlrev_b32 v5, 2, v0")
    for k in range(4):
        E(f"  ds_read_b32 v{28+k}, v5 offset:{4096+1792*k+1024*rep}")
    E("  s_waitcnt lgkmcnt(0)")
    E("  v_add_f32 v28, v28, v29")
    E("  v_add_f32 v30, v30, v31")
    E("  v_add_f32 v28, v28, v30")
    E("  s_mul_i32 s3, s2, 1792")
    E(f"  s_add_u32 s3, s3, {WS_OP + 1024*rep}")
    E("  buffer_store_dword v28, v5, s[20:23], s3 offen")
E("  s_waitcnt vmcnt(0)")
E("K3_END:")
E("  s_endpgm")

kernel_begin("k4_final_kernel")
E("  s_cmp_ge_u32 s2, 28")
E("  s_cbranch_scc1 K4_END")
E("  s_load_dwordx2 s[4:5], s[0:1], 0")
E("  s_load_dwordx2 s[6:7], s[0:1], 80")
E("  s_load_dwordx2 s[8:9], s[0:1], 96")
E("  s_load_dwordx2 s[36:37], s[0:1], 72")
E("  s_waitcnt lgkmcnt(0)")
srd(12, 4, 896)
srd(16, 6, 896)
srd(20, 8, WS_SIZE)
srd(44, 36, 2)
E("  v_and_b32 v1, 15, v0")
E("  v_lshrrev_b32 v2, 4, v0")
E("  v_mul_u32_u24 v3, 28672, v2")
E("  v_lshl_add_u32 v3, v1, 2, v3")
E("  s_lshl_b32 s3, s2, 6")
E(f"  s_add_u32 s3, s3, {WS_OP}")
for k in range(16):
    E(f"  s_add_u32 s24, s3, {1792*k}")
    E(f"  buffer_load_dword v{16+k}, v3, s[20:23], s24 offen")
E("  s_waitcnt vmcnt(0)")
for k in range(1, 16):
    E(f"  v_add_f32 v16, v16, v{16+k}")
E("  v_lshlrev_b32 v4, 2, v0")
E("  ds_write_b32 v4, v16")
E("  s_waitcnt lgkmcnt(0)")
E("  s_barrier")
E("  v_cmp_gt_u32 vcc, 16, v0")
E("  s_and_saveexec_b64 s[30:31], vcc")
E("  s_cbranch_execz K4_END")
for k in range(16):
    E(f"  ds_read_b32 v{16+k}, v4 offset:{64*k}")
E("  s_lshl_b32 s3, s2, 5")
E("  v_lshlrev_b32 v5, 1, v0")
E("  v_add_u32 v5, s3, v5")
E("  buffer_load_ushort v6, v5, s[12:15], 0 offen")
E("  v_mov_b32 v8, 0")
E("  buffer_load_ushort v7, v8, s[44:47], 0 offen")
E("  s_waitcnt vmcnt(0) lgkmcnt(0)")
for k in range(1, 16):
    E(f"  v_add_f32 v16, v16, v{16+k}")
E("  v_lshlrev_b32 v6, 16, v6")
E("  v_lshlrev_b32 v7, 16, v7")
E("  v_add_f32 v16, v16, v7")
E("  v_add_f32 v16, v16, v6")
E("  v_cvt_pk_bf16_f32 v16, v16, v16")
E("  buffer_store_short v16, v5, s[16:19], 0 offen")
E("  s_waitcnt vmcnt(0)")
E("K4_END:")
E("  s_endpgm")

E('.section .rodata,"a"')
E(".p2align 6")
kd("k1_qproj_kernel", 64)
kd("k2_attn_kernel", 192)
kd("k3_oproj_kernel", 160)
kd("k4_final_kernel", 32)

open(sys.argv[1], "w").write("\n".join(out) + "\n")
```

```python
import sys, math

out = []
def E(s=""):
    out.append(s)

WS_Q = 0x0
WS_PART = 0x10000
WS_M = 0x100000
WS_L = 0x101000
WS_CNT = 0x200000
WS_ACC = 0x204000
WS_ZERO_BYTES = 0x4000 + 16*2048
WS_SIZE = 0x20000000
NAME = "parallel_sum__sliding_block_cached__mixer_token_mlp__decode_kernel"

L_RED = 0
L_WMAX = 36864
L_WL = 36928
L_Q = 37120
L_BP = 38144
L_ORED = 39936
L_OUT = 40960
L_FLAG = 48128
L_W4 = 48192
LDS_BYTES = 48192 + 8192

def srd(d, b, nbytes):
    E(f"  s_mov_b32 s{d}, s{b}")
    E(f"  s_and_b32 s{d+1}, s{b+1}, 0xffff")
    E(f"  s_mov_b32 s{d+2}, {nbytes:#x}")
    E(f"  s_mov_b32 s{d+3}, 0x00020000")

def bf16r(v):
    E(f"  v_cvt_pk_bf16_f32 v{v}, v{v}, v{v}")
    E(f"  v_lshlrev_b32 v{v}, 16, v{v}")

def wave_reduce(op, v, s0):
    for m in ("quad_perm:[1,0,3,2]", "quad_perm:[2,3,0,1]", "row_ror:4", "row_ror:8"):
        E("  s_nop 1")
        E(f"  {op} v{v}, v{v}, v{v} {m} row_mask:0xf bank_mask:0xf")
    E("  s_nop 1")
    for k in range(4):
        E(f"  v_readlane_b32 s{s0+k}, v{v}, {16*k}")
    E("  s_nop 1")
    E(f"  v_mov_b32 v{v}, s{s0}")
    for k in range(1, 4):
        E(f"  {op} v{v}, s{s0+k}, v{v}")

def layernorm(x, t, s0):
    E(f"  v_mov_b32 v{t}, v{x}")
    for j in range(1, 7):
        E(f"  v_add_f32 v{t}, v{t}, v{x+j}")
    wave_reduce("v_add_f32", t, s0)
    E(f"  v_mul_f32 v{t}, {1.0/448!r}, v{t}")
    E(f"  v_mov_b32 v{t+1}, 0")
    for j in range(7):
        E(f"  v_sub_f32 v{t+2}, v{x+j}, v{t}")
        E(f"  v_fmac_f32 v{t+1}, v{t+2}, v{t+2}")
    wave_reduce("v_add_f32", t+1, s0)
    E(f"  v_mul_f32 v{t+1}, {1.0/448!r}, v{t+1}")
    bf16r(t)
    bf16r(t+1)
    E(f"  v_add_f32 v{t+1}, {1e-5!r}, v{t+1}")
    bf16r(t+1)
    E(f"  v_sqrt_f32 v{t+1}, v{t+1}")
    E("  s_nop 0")
    bf16r(t+1)
    E(f"  v_rcp_f32 v{t+1}, v{t+1}")
    E("  s_nop 0")
    for j in range(7):
        E(f"  v_sub_f32 v{x+j}, v{x+j}, v{t}")
        bf16r(x+j)
        E(f"  v_mul_f32 v{x+j}, v{x+j}, v{t+1}")
        bf16r(x+j)

def poll(label, srdr, soff, target, vtmp, vzero, stmp):
    E(f"{label}:")
    E(f"  buffer_load_dword v{vtmp}, v{vzero}, s[{srdr}:{srdr+3}], {soff} offen sc0 sc1")
    E("  s_waitcnt vmcnt(0)")
    E(f"  v_readfirstlane_b32 s{stmp}, v{vtmp}")
    E(f"  s_cmp_ge_u32 s{stmp}, {target}")
    E(f"  s_cbranch_scc1 {label}_D")
    E("  s_sleep 2")
    E(f"  s_branch {label}")
    E(f"{label}_D:")

E(f"; @launch grid=(256,1,1) block=(320,1,1) lds={LDS_BYTES}")
E('.amdgcn_target "amdgcn-amd-amdhsa--gfx950"')
E(".text")
E(f".globl {NAME}")
E(".p2align 8")
E(f".type {NAME},@function")
E(f"{NAME}:")
E("  s_cmp_ge_u32 s2, 256")
E("  s_cbranch_scc1 END")
E("  s_load_dwordx16 s[64:79], s[0:1], 0")
E("  s_load_dwordx8 s[80:87], s[0:1], 64")
E("  s_load_dwordx2 s[88:89], s[0:1], 96")
E("  v_lshrrev_b32 v1, 6, v0")
E("  v_and_b32 v2, 63, v0")
E("  s_nop 0")
E("  v_readfirstlane_b32 s3, v1")
E("  s_waitcnt lgkmcnt(0)")
srd(20, 88, WS_SIZE)
srd(40, 86, 256)
E("  s_lshr_b32 s90, s2, 5")
E("  s_and_b32 s91, s2, 31")
E("  s_cmp_eq_u32 s3, 4")
E("  s_cbranch_scc1 W4")

srd(12, 66, 0x8000000)
srd(16, 68, 0x8000000)
srd(28, 72, 4096*896)
E("  s_lshl_b32 s26, s90, 24")
E("  s_lshl_b32 s27, s91, 16")
E("  s_add_u32 s26, s26, s27")
E(f"  s_add_u32 s26, s26, {28672*512}")
E("  v_lshlrev_b32 v3, 14, v1")
E("  v_lshl_add_u32 v3, v2, 4, v3")
KR, VR, WOR = 64, 128, 192
for i in range(16):
    E(f"  s_add_u32 s60, s26, {1024*i}")
    E(f"  buffer_load_dwordx4 v[{KR+4*i}:{KR+4*i+3}], v3, s[12:15], s60 offen")
for i in range(16):
    E(f"  s_add_u32 s60, s26, {1024*i}")
    E(f"  buffer_load_dwordx4 v[{VR+4*i}:{VR+4*i+3}], v3, s[16:19], s60 offen")
E("  v_cvt_f32_u32 v208, v0")
E(f"  v_mul_f32 v208, {1.0/56!r}, v208")
E("  v_add_f32 v208, 0x3a000000, v208")
E("  v_cvt_u32_f32 v208, v208")
E("  v_mul_u32_u24 v209, 56, v208")
E("  v_sub_u32 v209, v0, v209")
E("  s_lshl_b32 s3, s2, 4")
E("  v_lshlrev_b32 v4, 2, v208")
E("  v_add_u32 v4, s3, v4")
E("  v_mul_u32_u24 v4, 896, v4")
E("  v_lshl_add_u32 v4, v209, 4, v4")
for k in range(4):
    E(f"  buffer_load_dwordx4 v[{WOR+4*k}:{WOR+4*k+3}], v4, s[28:31], 0 offen offset:{896*k}")
E("  s_barrier")
E("  v_and_b32 v4, 31, v2")
E("  v_lshlrev_b32 v4, 4, v4")
E(f"  ds_read_b128 v[8:11], v4 offset:{L_Q}")
E(f"  ds_read_b128 v[12:15], v4 offset:{L_Q+512}")
E("  s_waitcnt vmcnt(20) lgkmcnt(0)")
for i in range(16):
    for h in range(2):
        d = 16 + h*16 + i
        E(f"  v_mov_b32 v{d}, 0")
        for p in range(4):
            E(f"  v_dot2_f32_bf16 v{d}, v{KR+4*i+p}, v{8+4*h+p}, v{d}")
E("  v_mul_u32_u24 v5, 9216, v1")
E("  v_mul_u32_u24 v6, 144, v2")
E("  v_add_u32 v6, v5, v6")
E("  s_nop 2")
for k in range(8):
    E(f"  ds_write_b128 v6, v[{16+4*k}:{19+4*k}] offset:{16*k}")
E("  s_waitcnt lgkmcnt(0)")
E("  v_lshrrev_b32 v7, 5, v2")
E("  v_mul_u32_u24 v7, 4608, v7")
E("  v_and_b32 v6, 31, v2")
E("  v_lshl_add_u32 v6, v6, 2, v7")
E("  v_add_u32 v6, v5, v6")
for j in range(32):
    E(f"  ds_read_b32 v{16+j}, v6 offset:{144*j}")
E("  s_waitcnt lgkmcnt(0)")
for j in range(1, 32):
    E(f"  v_add_f32 v16, v16, v{16+j}")
E(f"  v_mul_f32 v16, {0.0625*math.log2(math.e)!r}, v16")
E("  v_mov_b32 v17, v16")
for m in ("quad_perm:[1,0,3,2]", "quad_perm:[2,3,0,1]", "row_ror:4", "row_ror:8"):
    E("  s_nop 1")
    E(f"  v_max_f32 v17, v17, v17 {m} row_mask:0xf bank_mask:0xf")
E("  s_nop 1")
for k in range(4):
    E(f"  v_readlane_b32 s{56+k}, v17, {16*k}")
E("  s_nop 1")
E("  v_mov_b32 v18, s56")
E("  v_max_f32 v18, s58, v18")
E("  v_mov_b32 v19, s57")
E("  v_max_f32 v19, s59, v19")
E("  v_lshlrev_b32 v6, 3, v1")
E(f"  ds_write_b64 v6, v[18:19] offset:{L_WMAX}")
E("  s_waitcnt lgkmcnt(0)")
E("  s_barrier")
E("  v_mov_b32 v6, 0")
E(f"  ds_read_b128 v[20:23], v6 offset:{L_WMAX}")
E(f"  ds_read_b128 v[24:27], v6 offset:{L_WMAX+16}")
E("  s_waitcnt lgkmcnt(0)")
E("  v_max_f32 v18, v20, v22")
E("  v_max_f32 v18, v18, v24")
E("  v_max_f32 v8, v18, v26")
E("  v_max_f32 v19, v21, v23")
E("  v_max_f32 v19, v19, v25")
E("  v_max_f32 v9, v19, v27")
E("  v_and_b32 v6, 16, v2")
E("  v_cmp_eq_u32 vcc, 0, v6")
E("  s_nop 1")
E("  v_cndmask_b32 v17, v9, v8, vcc")
E("  v_sub_f32 v16, v16, v17")
E("  v_exp_f32 v16, v16")
E("  s_nop 0")
E("  v_mov_b32 v17, v16")
for m in ("quad_perm:[1,0,3,2]", "quad_perm:[2,3,0,1]", "row_ror:4", "row_ror:8"):
    E("  s_nop 1")
    E(f"  v_add_f32 v17, v17, v17 {m} row_mask:0xf bank_mask:0xf")
E("  s_nop 1")
for k in range(4):
    E(f"  v_readlane_b32 s{56+k}, v17, {16*k}")
E("  s_nop 1")
E("  v_mov_b32 v20, s56")
E("  v_add_f32 v20, s58, v20")
E("  v_mov_b32 v21, s57")
E("  v_add_f32 v21, s59, v21")
E("  v_lshlrev_b32 v6, 3, v1")
E(f"  ds_write_b64 v6, v[20:21] offset:{L_WL}")
E("  v_lshl_add_u32 v6, v2, 2, v5")
E("  ds_write_b32 v6, v16")
E("  s_waitcnt lgkmcnt(0)")
E("  v_lshrrev_b32 v7, 5, v2")
E("  v_lshl_add_u32 v6, v7, 7, v5")
for k in range(8):
    E(f"  ds_read_b128 v[{16+4*k}:{19+4*k}], v6 offset:{16*k}")
for k in range(16):
    E(f"  v_mov_b32 v{48+k}, 0")
E("  s_waitcnt vmcnt(4) lgkmcnt(0)")
for i in range(16):
    for p in range(4):
        E(f"  v_lshlrev_b32 v6, 16, v{VR+4*i+p}")
        E(f"  v_and_b32 v7, 0xffff0000, v{VR+4*i+p}")
        for h in range(2):
            E(f"  v_fmac_f32 v{48+8*h+2*p}, v{16+16*h+i}, v6")
            E(f"  v_fmac_f32 v{48+8*h+2*p+1}, v{16+16*h+i}, v7")
E("  s_barrier")
E("  v_lshrrev_b32 v7, 5, v0")
E("  v_lshlrev_b32 v7, 11, v7")
E("  v_and_b32 v6, 31, v2")
E("  v_lshl_add_u32 v6, v6, 5, v7")
for h in range(2):
    E(f"  ds_write_b128 v6, v[{48+8*h}:{51+8*h}] offset:{1024*h}")
    E(f"  ds_write_b128 v6, v[{52+8*h}:{55+8*h}] offset:{1024*h+16}")
E("  s_waitcnt lgkmcnt(0)")
E("  s_barrier")
E("  v_lshlrev_b32 v6, 2, v0")
for h in range(2):
    for k in range(8):
        E(f"  ds_read_b32 v{16+8*h+k}, v6 offset:{2048*k+1024*h}")
E("  v_mov_b32 v7, 0")
E(f"  ds_read_b128 v[32:35], v7 offset:{L_WL}")
E(f"  ds_read_b128 v[36:39], v7 offset:{L_WL+16}")
E("  s_waitcnt lgkmcnt(0)")
for h in range(2):
    for k in range(1, 8):
        E(f"  v_add_f32 v{16+8*h}, v{16+8*h}, v{16+8*h+k}")
E("  v_add_f32 v32, v32, v34")
E("  v_add_f32 v32, v32, v36")
E("  v_add_f32 v32, v32, v38")
E("  v_add_f32 v33, v33, v35")
E("  v_add_f32 v33, v33, v37")
E("  v_add_f32 v33, v33, v39")
E("  s_lshl_b32 s27, s90, 16")
E("  s_lshl_b32 s28, s91, 10")
out.pop()
E("  s_lshl_b32 s61, s91, 10")
E("  s_add_u32 s27, s27, s61")
E(f"  s_add_u32 s27, s27, {WS_PART}")
E("  s_add_u32 s61, s27, 32768")
E("  buffer_store_dword v16, v6, s[20:23], s27 offen sc0 sc1")
E("  buffer_store_dword v24, v6, s[20:23], s61 offen sc0 sc1")
E("  v_cmp_eq_u32 vcc, 0, v0")
E("  s_and_saveexec_b64 s[92:93], vcc")
out.pop(); out.pop()
E("  v_readfirstlane_b32 s3, v1")
E("  s_cmp_lg_u32 s3, 0")
E("  s_cbranch_scc1 SKIP_ML")
E("  s_lshl_b32 s27, s90, 8")
E("  s_lshl_b32 s61, s91, 2")
E("  s_add_u32 s27, s27, s61")
E(f"  s_add_u32 s61, s27, {WS_M}")
E("  v_mov_b32 v6, 0")
E("  buffer_store_dword v8, v6, s[20:23], s61 offen sc0 sc1")
E("  buffer_store_dword v9, v6, s[20:23], s61 offen offset:128 sc0 sc1")
E(f"  s_add_u32 s61, s27, {WS_L}")
E("  buffer_store_dword v32, v6, s[20:23], s61 offen sc0 sc1")
E("  buffer_store_dword v33, v6, s[20:23], s61 offen offset:128 sc0 sc1")
E("SKIP_ML:")
E("  s_waitcnt vmcnt(0)")
E("  s_barrier")
E("  s_cmp_lg_u32 s3, 0")
E("  s_cbranch_scc1 SKIP_SYNC2")
E("  v_mov_b32 v6, 0")
poll("P_RST", 40, "64", 1, 10, 6, 60)
E("  s_lshl_b32 s61, s90, 8")
E(f"  s_add_u32 s61, s61, {WS_CNT}")
E("  v_mov_b32 v11, 1")
E("  s_mov_b64 exec, 1")
E("  buffer_atomic_add v11, v6, s[20:23], s61 offen sc1")
E("  s_mov_b64 exec, -1")
poll("P_G2", 20, "s61", 32, 10, 6, 60)
E("SKIP_SYNC2:")
E("  s_barrier")
E("  s_lshr_b32 s62, s2, 4")
E("  s_and_b32 s63, s2, 15")
E("  s_lshl_b32 s63, s63, 6")
E("  s_lshl_b32 s26, s62, 7")
E(f"  s_add_u32 s27, s26, {WS_M}")
E(f"  s_add_u32 s61, s26, {WS_L}")
E("  v_mov_b32 v4, 0")
for k in range(8):
    E(f"  buffer_load_dwordx4 v[{96+4*k}:{99+4*k}], v4, s[20:23], s27 offen offset:{16*k} sc0 sc1")
for k in range(8):
    E(f"  buffer_load_dwordx4 v[{128+4*k}:{131+4*k}], v4, s[20:23], s61 offen offset:{16*k} sc0 sc1")
E("  v_lshrrev_b32 v5, 4, v0")
E("  v_lshlrev_b32 v5, 10, v5")
E("  v_and_b32 v6, 15, v0")
E("  v_lshl_add_u32 v5, v6, 2, v5")
E("  s_lshl_b32 s26, s62, 15")
E("  s_add_u32 s26, s26, s63")
E(f"  s_add_u32 s26, s26, {WS_PART}")
E("  s_add_u32 s60, s26, 16384")
E("  buffer_load_dword v8, v5, s[20:23], s26 offen sc0 sc1")
E("  buffer_load_dword v9, v5, s[20:23], s60 offen sc0 sc1")
E("  v_lshrrev_b32 v5, 4, v0")
E("  v_lshlrev_b32 v5, 2, v5")
E("  buffer_load_dword v22, v5, s[20:23], s27 offen sc0 sc1")
E("  buffer_load_dword v23, v5, s[20:23], s27 offen offset:64 sc0 sc1")
E("  s_waitcnt vmcnt(0)")
E("  v_max_f32 v20, v96, v97")
for k in range(2, 32):
    E(f"  v_max_f32 v20, v20, v{96+k}")
E("  v_mov_b32 v21, 0")
for k in range(32):
    E(f"  v_sub_f32 v{96+k}, v{96+k}, v20")
    E(f"  v_exp_f32 v{96+k}, v{96+k}")
    E("  s_nop 0")
    E(f"  v_fmac_f32 v21, v{96+k}, v{128+k}")
E("  v_rcp_f32 v21, v21")
E("  v_sub_f32 v22, v22, v20")
E("  v_exp_f32 v22, v22")
E("  v_sub_f32 v23, v23, v20")
E("  v_exp_f32 v23, v23")
E("  s_nop 0")
E("  v_mul_f32 v8, v8, v22")
E("  v_fmac_f32 v8, v9, v23")
E("  v_mul_f32 v8, v8, v21")
E("  v_lshlrev_b32 v5, 2, v0")
E(f"  ds_write_b32 v5, v8 offset:{L_ORED}")
E("  s_waitcnt lgkmcnt(0)")
E("  s_barrier")
E("  v_lshlrev_b32 v5, 4, v208")
for c in range(16):
    E(f"  ds_read_b128 v[{96+4*c}:{99+4*c}], v5 offset:{L_ORED+64*c}")
E("  s_waitcnt lgkmcnt(0)")
for k in range(4):
    E(f"  v_add_f32 v{24+k}, v{96+k}, v{100+k}")
    for c in range(2, 16):
        E(f"  v_add_f32 v{24+k}, v{24+k}, v{96+4*c+k}")
    bf16r(24+k)
for e in range(8):
    E(f"  v_mov_b32 v{32+e}, 0")
for k in range(4):
    for p in range(4):
        E(f"  v_lshlrev_b32 v40, 16, v{WOR+4*k+p}")
        E(f"  v_and_b32 v41, 0xffff0000, v{WOR+4*k+p}")
        E(f"  v_fmac_f32 v{32+2*p}, v{24+k}, v40")
        E(f"  v_fmac_f32 v{32+2*p+1}, v{24+k}, v41")
E("  v_cmp_gt_u32 vcc, 224, v0")
E("  s_and_saveexec_b64 s[92:93], vcc")
E("  v_mul_u32_u24 v5, 1792, v208")
E("  v_lshl_add_u32 v5, v209, 5, v5")
E(f"  ds_write_b128 v5, v[32:35] offset:{L_OUT}")
E(f"  ds_write_b128 v5, v[36:39] offset:{L_OUT+16}")
E("  s_or_b64 exec, exec, s[92:93]")
E("  s_waitcnt lgkmcnt(0)")
E("  s_barrier")
E("  s_and_b32 s60, s2, 15")
E("  s_lshl_b32 s60, s60, 11")
E(f"  s_add_u32 s60, s60, {WS_ACC}")
for rep in range(2):
    if rep == 1:
        E("  v_cmp_gt_u32 vcc, 192, v0")
        E("  s_and_saveexec_b64 s[92:93], vcc")
    E("  v_lshlrev_b32 v5, 2, v0")
    for k in range(4):
        E(f"  ds_read_b32 v{28+k}, v5 offset:{L_OUT+1792*k+1024*rep}")
    E(f"  ds_read_b32 v27, v5 offset:{L_BP+1024*rep}")
    E("  s_waitcnt lgkmcnt(0)")
    E("  v_add_f32 v28, v28, v29")
    E("  v_add_f32 v30, v30, v31")
    E("  v_add_f32 v28, v28, v30")
    E("  v_add_f32 v28, v28, v27")
    E(f"  buffer_atomic_add_f32 v28, v5, s[20:23], s60 offen offset:{1024*rep} sc1")
E("  s_or_b64 exec, exec, s[92:93]")
E("  s_waitcnt vmcnt(0)")
E("  s_barrier")
E("  s_cmp_lg_u32 s3, 0")
E("  s_cbranch_scc1 SKIP_ARR")
E("  v_mov_b32 v6, 0")
E("  v_mov_b32 v11, 1")
E("  s_and_b32 s60, s2, 15")
E("  s_lshl_b32 s60, s60, 8")
E(f"  s_add_u32 s60, s60, {WS_CNT+4096}")
E("  s_mov_b64 exec, 1")
E("  buffer_atomic_add v11, v6, s[20:23], s60 offen sc0 sc1")
E("  s_mov_b64 exec, -1")
E("  s_waitcnt vmcnt(0)")
E("  v_readfirstlane_b32 s61, v11")
E("  v_mov_b32 v12, 0")
E("  s_cmp_lg_u32 s61, 15")
E("  s_cbranch_scc1 ARR_DONE")
E("  v_mov_b32 v11, 1")
E(f"  s_mov_b32 s60, {WS_CNT+8192}")
E("  s_mov_b64 exec, 1")
E("  buffer_atomic_add v11, v6, s[20:23], s60 offen sc0 sc1")
E("  s_mov_b64 exec, -1")
E("  s_waitcnt vmcnt(0)")
E("  v_readfirstlane_b32 s61, v11")
E("  s_cmp_lg_u32 s61, 15")
E("  s_cbranch_scc1 ARR_DONE")
E("  v_mov_b32 v12, 1")
E("ARR_DONE:")
E(f"  ds_write_b32 v6, v12 offset:{L_FLAG}")
E("  s_waitcnt lgkmcnt(0)")
E("SKIP_ARR:")
E("  s_barrier")
E("  v_mov_b32 v6, 0")
E(f"  ds_read_b32 v12, v6 offset:{L_FLAG}")
E("  s_waitcnt lgkmcnt(0)")
E("  v_readfirstlane_b32 s61, v12")
E("  s_cmp_eq_u32 s61, 0")
E("  s_cbranch_scc1 END")
srd(12, 64, 896)
srd(16, 84, 896)
srd(28, 82, 2)
E("  v_cmp_gt_u32 vcc, 224, v0")
E("  s_and_saveexec_b64 s[92:93], vcc")
E("  v_lshlrev_b32 v5, 3, v0")
for k in range(16):
    E(f"  s_mov_b32 s60, {WS_ACC+2048*k}")
    E(f"  buffer_load_dwordx2 v[{96+2*k}:{97+2*k}], v5, s[20:23], s60 offen sc0 sc1")
E("  v_lshlrev_b32 v7, 2, v0")
E("  buffer_load_dword v8, v7, s[12:15], 0 offen")
E("  v_mov_b32 v6, 0")
E("  buffer_load_ushort v9, v6, s[28:31], 0 offen")
E("  s_waitcnt vmcnt(0)")
for k in range(1, 16):
    E(f"  v_add_f32 v96, v96, v{96+2*k}")
    E(f"  v_add_f32 v97, v97, v{97+2*k}")
E("  v_lshlrev_b32 v9, 16, v9")
E("  v_lshlrev_b32 v10, 16, v8")
E("  v_and_b32 v8, 0xffff0000, v8")
E("  v_add_f32 v96, v96, v9")
E("  v_add_f32 v97, v97, v9")
E("  v_add_f32 v96, v96, v10")
E("  v_add_f32 v97, v97, v8")
E("  v_cvt_pk_bf16_f32 v96, v96, v97")
E("  buffer_store_dword v96, v7, s[16:19], 0 offen")
E("  s_waitcnt vmcnt(0)")
E("  s_branch END")

E("W4:")
srd(12, 64, 896)
srd(16, 70, 448*8192)
srd(28, 76, 3584)
srd(32, 78, 3584)
srd(36, 80, 3584)
X = 10
E("  v_lshlrev_b32 v3, 1, v2")
for j in range(7):
    E(f"  buffer_load_ushort v{X+j}, v3, s[12:15], 0 offen offset:{128*j}")
E("  v_lshrrev_b32 v4, 1, v2")
E("  v_and_b32 v5, 1, v2")
E("  v_lshlrev_b32 v6, 13, v4")
E("  v_lshl_add_u32 v6, v5, 4, v6")
E("  s_lshl_b32 s3, s2, 5")
E("  v_add_u32 v6, s3, v6")
for j in range(14):
    E(f"  s_mov_b32 s60, {j*32*8192}")
    E(f"  buffer_load_dwordx4 v[{64+4*j}:{67+4*j}], v6, s[16:19], s60 offen")
E("  s_mul_i32 s3, s2, 14")
E("  v_mov_b32 v7, s3")
for k in range(7):
    E(f"  buffer_load_ushort v{128+k}, v7, s[28:31], 0 offen offset:{2*k}")
    E(f"  buffer_load_ushort v{136+k}, v7, s[32:35], 0 offen offset:{2*k}")
    E(f"  buffer_load_ushort v{144+k}, v7, s[36:39], 0 offen offset:{2*k}")
E("  s_cmp_lg_u32 s2, 0")
E("  s_cbranch_scc1 W4_NOZ")
E("  v_mov_b32 v20, 0")
E("  v_mov_b32 v21, 0")
E("  v_mov_b32 v22, 0")
E("  v_mov_b32 v23, 0")
E("  v_lshlrev_b32 v8, 4, v2")
for k in range(WS_ZERO_BYTES // 1024):
    E(f"  s_mov_b32 s60, {WS_CNT + 1024*k}")
    E("  buffer_store_dwordx4 v[20:23], v8, s[20:23], s60 offen sc0 sc1")
E("  s_waitcnt vmcnt(0)")
E("  v_mov_b32 v9, 1")
E("  v_mov_b32 v8, 0")
E("  buffer_store_dword v9, v8, s[40:43], 0 offen offset:64 sc0 sc1")
E("W4_NOZ:")
E("  s_waitcnt vmcnt(35)")
for j in range(7):
    E(f"  v_lshlrev_b32 v{X+j}, 16, v{X+j}")
layernorm(X, 17, 56)
E("  v_lshlrev_b32 v3, 2, v2")
for j in range(7):
    E(f"  ds_write_b32 v3, v{X+j} offset:{L_W4+256*j}")
E("  s_waitcnt lgkmcnt(0)")
E("  v_lshlrev_b32 v8, 2, v4")
for j in range(14):
    E(f"  ds_read_b32 v{160+j}, v8 offset:{L_W4+128*j}")
for e in range(8):
    E(f"  v_mov_b32 v{40+e}, 0")
E("  s_waitcnt vmcnt(21) lgkmcnt(0)")
for j in range(14):
    for p in range(4):
        E(f"  v_lshlrev_b32 v50, 16, v{64+4*j+p}")
        E(f"  v_and_b32 v51, 0xffff0000, v{64+4*j+p}")
        E(f"  v_fmac_f32 v{40+2*p}, v{160+j}, v50")
        E(f"  v_fmac_f32 v{40+2*p+1}, v{160+j}, v51")
E("  v_lshlrev_b32 v8, 6, v4")
E("  v_lshl_add_u32 v8, v5, 5, v8")
E(f"  ds_write_b128 v8, v[40:43] offset:{L_W4+2048}")
E(f"  ds_write_b128 v8, v[44:47] offset:{L_W4+2048+16}")
E("  s_waitcnt lgkmcnt(0)")
E("  v_and_b32 v8, 15, v2")
E("  v_lshrrev_b32 v9, 4, v2")
E("  v_lshlrev_b32 v9, 9, v9")
E("  v_lshl_add_u32 v8, v8, 2, v9")
for k in range(8):
    E(f"  ds_read_b32 v{40+k}, v8 offset:{L_W4+2048+64*k}")
E("  s_waitcnt lgkmcnt(0)")
for k in range(1, 8):
    E(f"  v_add_f32 v40, v40, v{40+k}")
E("  v_lshlrev_b32 v8, 2, v2")
E(f"  ds_write_b32 v8, v40 offset:{L_W4+4096}")
E("  s_waitcnt lgkmcnt(0)")
E("  v_and_b32 v8, 15, v2")
E("  v_lshlrev_b32 v8, 2, v8")
for k in range(4):
    E(f"  ds_read_b32 v{40+k}, v8 offset:{L_W4+4096+64*k}")
E("  s_waitcnt lgkmcnt(0)")
E("  v_add_f32 v40, v40, v41")
E("  v_add_f32 v42, v42, v43")
E("  v_add_f32 v40, v40, v42")
E("  v_cvt_pk_bf16_f32 v40, v40, v40")
E("  v_and_b32 v8, 15, v2")
E("  v_lshlrev_b32 v8, 1, v8")
E("  s_lshl_b32 s3, s2, 5")
E("  v_add_u32 v8, s3, v8")
E("  v_cmp_gt_u32 vcc, 16, v2")
E("  s_and_saveexec_b64 s[92:93], vcc")
E(f"  buffer_store_short v40, v8, s[20:23], 0 offen offset:{WS_Q} sc0 sc1")
E("  s_or_b64 exec, exec, s[92:93]")
E("  s_waitcnt vmcnt(0)")
E("  v_mov_b32 v60, 1")
E("  v_mov_b32 v6, 0")
E("  s_lshl_b32 s61, s90, 2")
E("  s_mov_b64 exec, 1")
E("  buffer_atomic_add v60, v6, s[40:43], s61 offen sc1")
E("  s_mov_b64 exec, -1")
layernorm(X, 17, 56)
for j in range(7):
    E(f"  v_mov_b32 v{24+j}, 0")
for k in range(7):
    E(f"  v_lshlrev_b32 v{128+k}, 16, v{128+k}")
    E(f"  v_lshlrev_b32 v{136+k}, 16, v{136+k}")
    E(f"  v_lshlrev_b32 v{144+k}, 16, v{144+k}")
    for j in range(7):
        u = 55
        E(f"  v_mul_f32 v{u}, v{X+j}, v{128+k}")
        bf16r(u)
        E(f"  v_add_f32 v{u}, v{u}, v{136+k}")
        bf16r(u)
        E(f"  v_mul_f32 v56, v{u}, v{u}")
        E(f"  v_mul_f32 v56, v56, v{u}")
        E(f"  v_mul_f32 v56, {0.044715!r}, v56")
        E(f"  v_add_f32 v56, v56, v{u}")
        c = math.sqrt(2/math.pi) * 2 * math.log2(math.e)
        E(f"  v_mul_f32 v56, {c!r}, v56")
        E("  v_exp_f32 v56, v56")
        E("  s_nop 0")
        E("  v_add_f32 v56, 1.0, v56")
        E("  v_rcp_f32 v56, v56")
        E("  s_nop 0")
        E("  v_sub_f32 v56, 1.0, v56")
        E(f"  v_mul_f32 v56, v56, v{u}")
        bf16r(56)
        E(f"  v_fmac_f32 v{24+j}, v56, v{144+k}")
E("  v_lshlrev_b32 v3, 2, v2")
for j in range(7):
    E(f"  ds_write_b32 v3, v{24+j} offset:{L_BP+256*j}")
E("  v_mov_b32 v6, 0")
poll("P_Q", 40, "s61", 32, 10, 6, 60)
E("  s_lshl_b32 s60, s90, 10")
E(f"  s_add_u32 s60, s60, {WS_Q}")
E("  v_lshlrev_b32 v8, 4, v2")
E("  buffer_load_dwordx4 v[40:43], v8, s[20:23], s60 offen sc0 sc1")
E("  s_waitcnt vmcnt(0)")
E(f"  ds_write_b128 v8, v[40:43] offset:{L_Q}")
E("  s_waitcnt lgkmcnt(0)")
E("  s_barrier")
E("END:")
E("  s_endpgm")

E('.section .rodata,"a"')
E(".p2align 6")
E(f".amdhsa_kernel {NAME}")
E("  .amdhsa_next_free_vgpr 212")
E("  .amdhsa_next_free_sgpr 96")
E("  .amdhsa_accum_offset 212")
E("  .amdhsa_group_segment_fixed_size 0")
E("  .amdhsa_kernarg_size 104")
E("  .amdhsa_user_sgpr_count 2")
E("  .amdhsa_user_sgpr_kernarg_segment_ptr 1")
E("  .amdhsa_system_sgpr_workgroup_id_x 1")
E(".end_amdhsa_kernel")
open(sys.argv[1], "w").write("\n".join(out) + "\n")
```

```python
import sys, math

out = []
def E(s=""):
    out.append(s)

WS_Q = 0x0
WS_PART = 0x10000
WS_M = 0x100000
WS_L = 0x101000
WS_CNT = 0x200000
WS_ACC = 0x204000
WS_ZERO_BYTES = 0x4000 + 16*2048
WS_SIZE = 0x20000000
NAME = "parallel_sum__sliding_block_cached__mixer_token_mlp__decode_kernel"

L_RED = 0
L_WMAX = 36864
L_WL = 36928
L_Q = 37120
L_BP = 56384
L_ORED = 39936
L_OUT = 40960
L_FLAG = 48128
L_W4 = 48192
LDS_BYTES = 56384 + 7168

def srd(d, b, nbytes):
    E(f"  s_mov_b32 s{d}, s{b}")
    E(f"  s_and_b32 s{d+1}, s{b+1}, 0xffff")
    E(f"  s_mov_b32 s{d+2}, {nbytes:#x}")
    E(f"  s_mov_b32 s{d+3}, 0x00020000")

def bf16r(v):
    E(f"  v_cvt_pk_bf16_f32 v{v}, v{v}, v{v}")
    E(f"  v_lshlrev_b32 v{v}, 16, v{v}")

def wave_reduce(op, v, s0):
    for m in ("quad_perm:[1,0,3,2]", "quad_perm:[2,3,0,1]", "row_ror:4", "row_ror:8"):
        E("  s_nop 1")
        E(f"  {op} v{v}, v{v}, v{v} {m} row_mask:0xf bank_mask:0xf")
    E("  s_nop 1")
    for k in range(4):
        E(f"  v_readlane_b32 s{s0+k}, v{v}, {16*k}")
    E("  s_nop 1")
    E(f"  v_mov_b32 v{v}, s{s0}")
    for k in range(1, 4):
        E(f"  {op} v{v}, s{s0+k}, v{v}")

def layernorm(x, t, s0):
    E(f"  v_mov_b32 v{t}, v{x}")
    for j in range(1, 7):
        E(f"  v_add_f32 v{t}, v{t}, v{x+j}")
    wave_reduce("v_add_f32", t, s0)
    E(f"  v_mul_f32 v{t}, {1.0/448!r}, v{t}")
    E(f"  v_mov_b32 v{t+1}, 0")
    for j in range(7):
        E(f"  v_sub_f32 v{t+2}, v{x+j}, v{t}")
        E(f"  v_fmac_f32 v{t+1}, v{t+2}, v{t+2}")
    wave_reduce("v_add_f32", t+1, s0)
    E(f"  v_mul_f32 v{t+1}, {1.0/448!r}, v{t+1}")
    bf16r(t)
    bf16r(t+1)
    E(f"  v_add_f32 v{t+1}, {1e-5!r}, v{t+1}")
    bf16r(t+1)
    E(f"  v_sqrt_f32 v{t+1}, v{t+1}")
    E("  s_nop 0")
    bf16r(t+1)
    E(f"  v_rcp_f32 v{t+1}, v{t+1}")
    E("  s_nop 0")
    for j in range(7):
        E(f"  v_sub_f32 v{x+j}, v{x+j}, v{t}")
        bf16r(x+j)
        E(f"  v_mul_f32 v{x+j}, v{x+j}, v{t+1}")
        bf16r(x+j)

STAMP = len(sys.argv) > 2
def stamp(k):
    if not STAMP: return
    E("  s_memrealtime s[94:95]")
    E("  s_waitcnt lgkmcnt(0)")
    E("  v_mov_b32 v210, s94")
    E("  s_lshl_b32 s94, s2, 6")
    E(f"  s_add_u32 s94, s94, {0x280000 + 4*k}")
    E("  v_mov_b32 v211, 0")
    E("  buffer_store_dword v210, v211, s[20:23], s94 offen")

def poll(label, srdr, soff, target, vtmp, vzero, stmp):
    E(f"{label}:")
    E(f"  buffer_load_dword v{vtmp}, v{vzero}, s[{srdr}:{srdr+3}], {soff} offen sc0 sc1")
    E("  s_waitcnt vmcnt(0)")
    E(f"  v_readfirstlane_b32 s{stmp}, v{vtmp}")
    E(f"  s_cmp_ge_u32 s{stmp}, {target}")
    E(f"  s_cbranch_scc1 {label}_D")
    E("  s_sleep 2")
    E(f"  s_branch {label}")
    E(f"{label}_D:")

E(f"; @launch grid=(256,1,1) block=(320,1,1) lds={LDS_BYTES}")
E('.amdgcn_target "amdgcn-amd-amdhsa--gfx950"')
E(".text")
E(f".globl {NAME}")
E(".p2align 8")
E(f".type {NAME},@function")
E(f"{NAME}:")
E("  s_cmp_ge_u32 s2, 256")
E("  s_cbranch_scc1 END")
E("  s_load_dwordx16 s[64:79], s[0:1], 0")
E("  s_load_dwordx8 s[80:87], s[0:1], 64")
E("  s_load_dwordx2 s[88:89], s[0:1], 96")
E("  v_lshrrev_b32 v1, 6, v0")
E("  v_and_b32 v2, 63, v0")
E("  s_nop 0")
E("  v_readfirstlane_b32 s3, v1")
E("  s_waitcnt lgkmcnt(0)")
srd(20, 88, WS_SIZE)
srd(40, 86, 256)
E("  s_lshr_b32 s90, s2, 5")
E("  s_and_b32 s91, s2, 31")
E("  s_cmp_eq_u32 s3, 4")
E("  s_cbranch_scc1 W4")

stamp(0)
srd(12, 66, 0x8000000)
srd(16, 68, 0x8000000)
srd(28, 72, 4096*896)
E("  s_lshl_b32 s26, s90, 24")
E("  s_lshl_b32 s27, s91, 16")
E("  s_add_u32 s26, s26, s27")
E(f"  s_add_u32 s26, s26, {28672*512}")
E("  v_lshlrev_b32 v3, 14, v1")
E("  v_lshl_add_u32 v3, v2, 4, v3")
KR, VR, WOR = 64, 128, 192
srd(44, 64, 896)
srd(48, 76, 3584)
srd(52, 78, 3584)
srd(32, 80, 3584)
E("  v_lshlrev_b32 v4, 1, v2")
for j in range(7):
    E(f"  buffer_load_ushort v{10+j}, v4, s[44:47], 0 offen offset:{128*j}")
E("  s_mul_i32 s60, s2, 14")
E("  v_lshl_add_u32 v4, v1, 1, s60")
for k in range(2):
    E(f"  buffer_load_ushort v{40+k}, v4, s[48:51], 0 offen offset:{8*k}")
    E(f"  buffer_load_ushort v{42+k}, v4, s[52:55], 0 offen offset:{8*k}")
    E(f"  buffer_load_ushort v{44+k}, v4, s[32:35], 0 offen offset:{8*k}")
E("  s_waitcnt vmcnt(0)")
for j in range(7):
    E(f"  v_lshlrev_b32 v{10+j}, 16, v{10+j}")
for k in range(6):
    E(f"  v_lshlrev_b32 v{40+k}, 16, v{40+k}")
E("  v_cmp_eq_u32 vcc, 3, v1")
E("  s_nop 1")
E("  v_cndmask_b32 v45, v45, 0, vcc")
layernorm(10, 17, 56)
layernorm(10, 17, 56)
for j in range(7):
    E(f"  v_mov_b32 v{24+j}, 0")
for k in range(2):
    for j in range(7):
        u = 55
        E(f"  v_mul_f32 v{u}, v{10+j}, v{40+k}")
        bf16r(u)
        E(f"  v_add_f32 v{u}, v{u}, v{42+k}")
        bf16r(u)
        E(f"  v_mul_f32 v56, v{u}, v{u}")
        E(f"  v_mul_f32 v56, v56, v{u}")
        E(f"  v_mul_f32 v56, {0.044715!r}, v56")
        E(f"  v_add_f32 v56, v56, v{u}")
        c = math.sqrt(2/math.pi) * 2 * math.log2(math.e)
        E(f"  v_mul_f32 v56, {c!r}, v56")
        E("  v_exp_f32 v56, v56")
        E("  s_nop 0")
        E("  v_add_f32 v56, 1.0, v56")
        E("  v_rcp_f32 v56, v56")
        E("  s_nop 0")
        E("  v_sub_f32 v56, 1.0, v56")
        E(f"  v_mul_f32 v56, v56, v{u}")
        bf16r(56)
        E(f"  v_fmac_f32 v{24+j}, v56, v{44+k}")
E("  v_mul_u32_u24 v4, 1792, v1")
E("  v_lshl_add_u32 v4, v2, 2, v4")
for j in range(7):
    E(f"  ds_write_b32 v4, v{24+j} offset:{L_BP+256*j}")
E("  s_waitcnt lgkmcnt(0)")
E("  s_barrier")
for i in range(16):
    E(f"  s_add_u32 s60, s26, {1024*i}")
    E(f"  buffer_load_dwordx4 v[{KR+4*i}:{KR+4*i+3}], v3, s[12:15], s60 offen")
for i in range(16):
    E(f"  s_add_u32 s60, s26, {1024*i}")
    E(f"  buffer_load_dwordx4 v[{VR+4*i}:{VR+4*i+3}], v3, s[16:19], s60 offen")
E("  v_cvt_f32_u32 v208, v0")
E(f"  v_mul_f32 v208, {1.0/56!r}, v208")
E("  v_add_f32 v208, 0x3a000000, v208")
E("  v_cvt_u32_f32 v208, v208")
E("  v_mul_u32_u24 v209, 56, v208")
E("  v_sub_u32 v209, v0, v209")
E("  s_lshl_b32 s3, s2, 4")
E("  v_lshlrev_b32 v4, 2, v208")
E("  v_add_u32 v4, s3, v4")
E("  v_mul_u32_u24 v4, 896, v4")
E("  v_lshl_add_u32 v4, v209, 4, v4")
for k in range(4):
    E(f"  buffer_load_dwordx4 v[{WOR+4*k}:{WOR+4*k+3}], v4, s[28:31], 0 offen offset:{896*k}")
E("  s_barrier")
stamp(1)
E("  v_and_b32 v4, 31, v2")
E("  v_lshlrev_b32 v4, 4, v4")
E(f"  ds_read_b128 v[8:11], v4 offset:{L_Q}")
E(f"  ds_read_b128 v[12:15], v4 offset:{L_Q+512}")
E("  s_waitcnt vmcnt(20) lgkmcnt(0)")
for i in range(16):
    for h in range(2):
        d = 16 + h*16 + i
        E(f"  v_mov_b32 v{d}, 0")
        for p in range(4):
            E(f"  v_dot2_f32_bf16 v{d}, v{KR+4*i+p}, v{8+4*h+p}, v{d}")
stamp(2)
E("  v_mul_u32_u24 v5, 9216, v1")
E("  v_mul_u32_u24 v6, 144, v2")
E("  v_add_u32 v6, v5, v6")
E("  s_nop 2")
for k in range(8):
    E(f"  ds_write_b128 v6, v[{16+4*k}:{19+4*k}] offset:{16*k}")
E("  s_waitcnt lgkmcnt(0)")
E("  v_lshrrev_b32 v7, 5, v2")
E("  v_mul_u32_u24 v7, 4608, v7")
E("  v_and_b32 v6, 31, v2")
E("  v_lshl_add_u32 v6, v6, 2, v7")
E("  v_add_u32 v6, v5, v6")
for j in range(32):
    E(f"  ds_read_b32 v{16+j}, v6 offset:{144*j}")
E("  s_waitcnt lgkmcnt(0)")
for j in range(1, 32):
    E(f"  v_add_f32 v16, v16, v{16+j}")
E(f"  v_mul_f32 v16, {0.0625*math.log2(math.e)!r}, v16")
E("  v_mov_b32 v17, v16")
for m in ("quad_perm:[1,0,3,2]", "quad_perm:[2,3,0,1]", "row_ror:4", "row_ror:8"):
    E("  s_nop 1")
    E(f"  v_max_f32 v17, v17, v17 {m} row_mask:0xf bank_mask:0xf")
E("  s_nop 1")
for k in range(4):
    E(f"  v_readlane_b32 s{56+k}, v17, {16*k}")
E("  s_nop 1")
E("  v_mov_b32 v18, s56")
E("  v_max_f32 v18, s58, v18")
E("  v_mov_b32 v19, s57")
E("  v_max_f32 v19, s59, v19")
E("  v_lshlrev_b32 v6, 3, v1")
E(f"  ds_write_b64 v6, v[18:19] offset:{L_WMAX}")
E("  s_waitcnt lgkmcnt(0)")
E("  s_barrier")
E("  v_mov_b32 v6, 0")
E(f"  ds_read_b128 v[20:23], v6 offset:{L_WMAX}")
E(f"  ds_read_b128 v[24:27], v6 offset:{L_WMAX+16}")
E("  s_waitcnt lgkmcnt(0)")
E("  v_max_f32 v18, v20, v22")
E("  v_max_f32 v18, v18, v24")
E("  v_max_f32 v8, v18, v26")
E("  v_max_f32 v19, v21, v23")
E("  v_max_f32 v19, v19, v25")
E("  v_max_f32 v9, v19, v27")
E("  v_and_b32 v6, 16, v2")
E("  v_cmp_eq_u32 vcc, 0, v6")
E("  s_nop 1")
E("  v_cndmask_b32 v17, v9, v8, vcc")
E("  v_sub_f32 v16, v16, v17")
E("  v_exp_f32 v16, v16")
E("  s_nop 0")
E("  v_mov_b32 v17, v16")
for m in ("quad_perm:[1,0,3,2]", "quad_perm:[2,3,0,1]", "row_ror:4", "row_ror:8"):
    E("  s_nop 1")
    E(f"  v_add_f32 v17, v17, v17 {m} row_mask:0xf bank_mask:0xf")
E("  s_nop 1")
for k in range(4):
    E(f"  v_readlane_b32 s{56+k}, v17, {16*k}")
E("  s_nop 1")
E("  v_mov_b32 v20, s56")
E("  v_add_f32 v20, s58, v20")
E("  v_mov_b32 v21, s57")
E("  v_add_f32 v21, s59, v21")
E("  v_lshlrev_b32 v6, 3, v1")
E(f"  ds_write_b64 v6, v[20:21] offset:{L_WL}")
E("  v_lshl_add_u32 v6, v2, 2, v5")
E("  ds_write_b32 v6, v16")
E("  s_waitcnt lgkmcnt(0)")
E("  v_lshrrev_b32 v7, 5, v2")
E("  v_lshl_add_u32 v6, v7, 7, v5")
for k in range(8):
    E(f"  ds_read_b128 v[{16+4*k}:{19+4*k}], v6 offset:{16*k}")
for k in range(16):
    E(f"  v_mov_b32 v{48+k}, 0")
E("  s_waitcnt vmcnt(4) lgkmcnt(0)")
for i in range(16):
    for p in range(4):
        E(f"  v_lshlrev_b32 v6, 16, v{VR+4*i+p}")
        E(f"  v_and_b32 v7, 0xffff0000, v{VR+4*i+p}")
        for h in range(2):
            E(f"  v_fmac_f32 v{48+8*h+2*p}, v{16+16*h+i}, v6")
            E(f"  v_fmac_f32 v{48+8*h+2*p+1}, v{16+16*h+i}, v7")
E("  s_barrier")
E("  v_lshrrev_b32 v7, 5, v0")
E("  v_lshlrev_b32 v7, 11, v7")
E("  v_and_b32 v6, 31, v2")
E("  v_lshl_add_u32 v6, v6, 5, v7")
for h in range(2):
    E(f"  ds_write_b128 v6, v[{48+8*h}:{51+8*h}] offset:{1024*h}")
    E(f"  ds_write_b128 v6, v[{52+8*h}:{55+8*h}] offset:{1024*h+16}")
E("  s_waitcnt lgkmcnt(0)")
E("  s_barrier")
E("  v_lshlrev_b32 v6, 2, v0")
for h in range(2):
    for k in range(8):
        E(f"  ds_read_b32 v{16+8*h+k}, v6 offset:{2048*k+1024*h}")
E("  v_mov_b32 v7, 0")
E(f"  ds_read_b128 v[32:35], v7 offset:{L_WL}")
E(f"  ds_read_b128 v[36:39], v7 offset:{L_WL+16}")
E("  s_waitcnt lgkmcnt(0)")
for h in range(2):
    for k in range(1, 8):
        E(f"  v_add_f32 v{16+8*h}, v{16+8*h}, v{16+8*h+k}")
E("  v_add_f32 v32, v32, v34")
E("  v_add_f32 v32, v32, v36")
E("  v_add_f32 v32, v32, v38")
E("  v_add_f32 v33, v33, v35")
E("  v_add_f32 v33, v33, v37")
E("  v_add_f32 v33, v33, v39")
E("  s_lshl_b32 s27, s90, 16")
E("  s_lshl_b32 s28, s91, 10")
out.pop()
E("  s_lshl_b32 s61, s91, 10")
E("  s_add_u32 s27, s27, s61")
E(f"  s_add_u32 s27, s27, {WS_PART}")
E("  s_add_u32 s61, s27, 32768")
E("  buffer_store_dword v16, v6, s[20:23], s27 offen sc0 sc1")
E("  buffer_store_dword v24, v6, s[20:23], s61 offen sc0 sc1")
E("  v_cmp_eq_u32 vcc, 0, v0")
E("  s_and_saveexec_b64 s[92:93], vcc")
out.pop(); out.pop()
E("  v_readfirstlane_b32 s3, v1")
E("  s_cmp_lg_u32 s3, 0")
E("  s_cbranch_scc1 SKIP_ML")
E("  s_lshl_b32 s27, s90, 8")
E("  s_lshl_b32 s61, s91, 2")
E("  s_add_u32 s27, s27, s61")
E(f"  s_add_u32 s61, s27, {WS_M}")
E("  v_mov_b32 v6, 0")
E("  buffer_store_dword v8, v6, s[20:23], s61 offen sc0 sc1")
E("  buffer_store_dword v9, v6, s[20:23], s61 offen offset:128 sc0 sc1")
E(f"  s_add_u32 s61, s27, {WS_L}")
E("  buffer_store_dword v32, v6, s[20:23], s61 offen sc0 sc1")
E("  buffer_store_dword v33, v6, s[20:23], s61 offen offset:128 sc0 sc1")
E("SKIP_ML:")
stamp(3)
E("  s_waitcnt vmcnt(0)")
E("  s_barrier")
E("  s_cmp_lg_u32 s3, 0")
E("  s_cbranch_scc1 SKIP_SYNC2")
E("  v_mov_b32 v6, 0")
poll("P_RST", 40, "64", 1, 10, 6, 60)
E("  s_lshl_b32 s61, s90, 8")
E(f"  s_add_u32 s61, s61, {WS_CNT}")
E("  v_mov_b32 v11, 1")
E("  s_mov_b64 exec, 1")
E("  buffer_atomic_add v11, v6, s[20:23], s61 offen sc1")
E("  s_mov_b64 exec, -1")
poll("P_G2", 20, "s61", 32, 10, 6, 60)
E("SKIP_SYNC2:")
E("  s_barrier")
stamp(4)
E("  s_lshr_b32 s62, s2, 4")
E("  s_and_b32 s63, s2, 15")
E("  s_lshl_b32 s63, s63, 6")
E("  s_lshl_b32 s26, s62, 7")
E(f"  s_add_u32 s27, s26, {WS_M}")
E(f"  s_add_u32 s61, s26, {WS_L}")
E("  v_mov_b32 v4, 0")
for k in range(8):
    E(f"  buffer_load_dwordx4 v[{96+4*k}:{99+4*k}], v4, s[20:23], s27 offen offset:{16*k} sc0 sc1")
for k in range(8):
    E(f"  buffer_load_dwordx4 v[{128+4*k}:{131+4*k}], v4, s[20:23], s61 offen offset:{16*k} sc0 sc1")
E("  v_lshrrev_b32 v5, 4, v0")
E("  v_lshlrev_b32 v5, 10, v5")
E("  v_and_b32 v6, 15, v0")
E("  v_lshl_add_u32 v5, v6, 2, v5")
E("  s_lshl_b32 s26, s62, 15")
E("  s_add_u32 s26, s26, s63")
E(f"  s_add_u32 s26, s26, {WS_PART}")
E("  s_add_u32 s60, s26, 16384")
E("  buffer_load_dword v8, v5, s[20:23], s26 offen sc0 sc1")
E("  buffer_load_dword v9, v5, s[20:23], s60 offen sc0 sc1")
E("  v_lshrrev_b32 v5, 4, v0")
E("  v_lshlrev_b32 v5, 2, v5")
E("  buffer_load_dword v22, v5, s[20:23], s27 offen sc0 sc1")
E("  buffer_load_dword v23, v5, s[20:23], s27 offen offset:64 sc0 sc1")
E("  s_waitcnt vmcnt(0)")
E("  v_max_f32 v20, v96, v97")
for k in range(2, 32):
    E(f"  v_max_f32 v20, v20, v{96+k}")
E("  v_mov_b32 v21, 0")
for k in range(32):
    E(f"  v_sub_f32 v{96+k}, v{96+k}, v20")
    E(f"  v_exp_f32 v{96+k}, v{96+k}")
    E("  s_nop 0")
    E(f"  v_fmac_f32 v21, v{96+k}, v{128+k}")
E("  v_rcp_f32 v21, v21")
E("  v_sub_f32 v22, v22, v20")
E("  v_exp_f32 v22, v22")
E("  v_sub_f32 v23, v23, v20")
E("  v_exp_f32 v23, v23")
E("  s_nop 0")
E("  v_mul_f32 v8, v8, v22")
E("  v_fmac_f32 v8, v9, v23")
E("  v_mul_f32 v8, v8, v21")
E("  v_lshlrev_b32 v5, 2, v0")
E(f"  ds_write_b32 v5, v8 offset:{L_ORED}")
E("  s_waitcnt lgkmcnt(0)")
E("  s_barrier")
E("  v_lshlrev_b32 v5, 4, v208")
for c in range(16):
    E(f"  ds_read_b128 v[{96+4*c}:{99+4*c}], v5 offset:{L_ORED+64*c}")
E("  s_waitcnt lgkmcnt(0)")
for k in range(4):
    E(f"  v_add_f32 v{24+k}, v{96+k}, v{100+k}")
    for c in range(2, 16):
        E(f"  v_add_f32 v{24+k}, v{24+k}, v{96+4*c+k}")
    bf16r(24+k)
for e in range(8):
    E(f"  v_mov_b32 v{32+e}, 0")
for k in range(4):
    for p in range(4):
        E(f"  v_lshlrev_b32 v40, 16, v{WOR+4*k+p}")
        E(f"  v_and_b32 v41, 0xffff0000, v{WOR+4*k+p}")
        E(f"  v_fmac_f32 v{32+2*p}, v{24+k}, v40")
        E(f"  v_fmac_f32 v{32+2*p+1}, v{24+k}, v41")
E("  v_cmp_gt_u32 vcc, 224, v0")
E("  s_and_saveexec_b64 s[92:93], vcc")
E("  v_mul_u32_u24 v5, 1792, v208")
E("  v_lshl_add_u32 v5, v209, 5, v5")
E(f"  ds_write_b128 v5, v[32:35] offset:{L_OUT}")
E(f"  ds_write_b128 v5, v[36:39] offset:{L_OUT+16}")
E("  s_or_b64 exec, exec, s[92:93]")
E("  s_waitcnt lgkmcnt(0)")
E("  s_barrier")
E("  s_and_b32 s60, s2, 15")
E("  s_lshl_b32 s60, s60, 11")
E(f"  s_add_u32 s60, s60, {WS_ACC}")
for rep in range(2):
    if rep == 1:
        E("  v_cmp_gt_u32 vcc, 192, v0")
        E("  s_and_saveexec_b64 s[92:93], vcc")
    E("  v_lshlrev_b32 v5, 2, v0")
    for k in range(4):
        E(f"  ds_read_b32 v{28+k}, v5 offset:{L_OUT+1792*k+1024*rep}")
    for k in range(4):
        E(f"  ds_read_b32 v{20+k}, v5 offset:{L_BP+1792*k+1024*rep}")
    E("  s_waitcnt lgkmcnt(0)")
    E("  v_add_f32 v27, v20, v21")
    E("  v_add_f32 v22, v22, v23")
    E("  v_add_f32 v27, v27, v22")
    E("  v_add_f32 v28, v28, v29")
    E("  v_add_f32 v30, v30, v31")
    E("  v_add_f32 v28, v28, v30")
    E("  v_add_f32 v28, v28, v27")
    E(f"  buffer_atomic_add_f32 v28, v5, s[20:23], s60 offen offset:{1024*rep} sc1")
E("  s_or_b64 exec, exec, s[92:93]")
E("  s_waitcnt vmcnt(0)")
E("  s_barrier")
stamp(5)
E("  s_cmp_lg_u32 s3, 0")
E("  s_cbranch_scc1 SKIP_ARR")
E("  v_mov_b32 v6, 0")
E("  v_mov_b32 v11, 1")
E("  s_and_b32 s60, s2, 15")
E("  s_lshl_b32 s60, s60, 8")
E(f"  s_add_u32 s60, s60, {WS_CNT+4096}")
E("  s_mov_b64 exec, 1")
E("  buffer_atomic_add v11, v6, s[20:23], s60 offen sc0 sc1")
E("  s_mov_b64 exec, -1")
E("  s_waitcnt vmcnt(0)")
E("  v_readfirstlane_b32 s61, v11")
E("  v_mov_b32 v12, 0")
E("  s_cmp_lg_u32 s61, 15")
E("  s_cbranch_scc1 ARR_DONE")
E("  v_mov_b32 v11, 1")
E(f"  s_mov_b32 s60, {WS_CNT+8192}")
E("  s_mov_b64 exec, 1")
E("  buffer_atomic_add v11, v6, s[20:23], s60 offen sc0 sc1")
E("  s_mov_b64 exec, -1")
E("  s_waitcnt vmcnt(0)")
E("  v_readfirstlane_b32 s61, v11")
E("  s_cmp_lg_u32 s61, 15")
E("  s_cbranch_scc1 ARR_DONE")
E("  v_mov_b32 v12, 1")
E("ARR_DONE:")
E(f"  ds_write_b32 v6, v12 offset:{L_FLAG}")
E("  s_waitcnt lgkmcnt(0)")
E("SKIP_ARR:")
E("  s_barrier")
E("  v_mov_b32 v6, 0")
E(f"  ds_read_b32 v12, v6 offset:{L_FLAG}")
E("  s_waitcnt lgkmcnt(0)")
E("  v_readfirstlane_b32 s61, v12")
E("  s_cmp_eq_u32 s61, 0")
E("  s_cbranch_scc1 END")
stamp(6)
srd(12, 64, 896)
srd(16, 84, 896)
srd(28, 82, 2)
E("  v_cmp_gt_u32 vcc, 224, v0")
E("  s_and_saveexec_b64 s[92:93], vcc")
E("  v_lshlrev_b32 v5, 3, v0")
for k in range(16):
    E(f"  s_mov_b32 s60, {WS_ACC+2048*k}")
    E(f"  buffer_load_dwordx2 v[{96+2*k}:{97+2*k}], v5, s[20:23], s60 offen sc0 sc1")
E("  v_lshlrev_b32 v7, 2, v0")
E("  buffer_load_dword v8, v7, s[12:15], 0 offen")
E("  v_mov_b32 v6, 0")
E("  buffer_load_ushort v9, v6, s[28:31], 0 offen")
E("  s_waitcnt vmcnt(0)")
for k in range(1, 16):
    E(f"  v_add_f32 v96, v96, v{96+2*k}")
    E(f"  v_add_f32 v97, v97, v{97+2*k}")
E("  v_lshlrev_b32 v9, 16, v9")
E("  v_lshlrev_b32 v10, 16, v8")
E("  v_and_b32 v8, 0xffff0000, v8")
E("  v_add_f32 v96, v96, v9")
E("  v_add_f32 v97, v97, v9")
E("  v_add_f32 v96, v96, v10")
E("  v_add_f32 v97, v97, v8")
E("  v_cvt_pk_bf16_f32 v96, v96, v97")
E("  buffer_store_dword v96, v7, s[16:19], 0 offen")
E("  s_waitcnt vmcnt(0)")
E("  s_branch END")

E("W4:")
srd(12, 64, 896)
srd(16, 70, 448*8192)
X = 10
E("  v_lshlrev_b32 v3, 1, v2")
for j in range(7):
    E(f"  buffer_load_ushort v{X+j}, v3, s[12:15], 0 offen offset:{128*j}")
E("  v_lshrrev_b32 v4, 1, v2")
E("  v_and_b32 v5, 1, v2")
E("  v_lshlrev_b32 v6, 13, v4")
E("  v_lshl_add_u32 v6, v5, 4, v6")
E("  s_lshl_b32 s3, s2, 5")
E("  v_add_u32 v6, s3, v6")
for j in range(14):
    E(f"  s_mov_b32 s60, {j*32*8192}")
    E(f"  buffer_load_dwordx4 v[{64+4*j}:{67+4*j}], v6, s[16:19], s60 offen")
E("  s_cmp_lg_u32 s2, 0")
E("  s_cbranch_scc1 W4_NOZ")
E("  v_mov_b32 v20, 0")
E("  v_mov_b32 v21, 0")
E("  v_mov_b32 v22, 0")
E("  v_mov_b32 v23, 0")
E("  v_lshlrev_b32 v8, 4, v2")
for k in range(WS_ZERO_BYTES // 1024):
    E(f"  s_mov_b32 s60, {WS_CNT + 1024*k}")
    E("  buffer_store_dwordx4 v[20:23], v8, s[20:23], s60 offen sc0 sc1")
E("  s_waitcnt vmcnt(0)")
E("  v_mov_b32 v9, 1")
E("  v_mov_b32 v8, 0")
E("  buffer_store_dword v9, v8, s[40:43], 0 offen offset:64 sc0 sc1")
E("W4_NOZ:")
E("  s_waitcnt vmcnt(14)")
stamp(7)
for j in range(7):
    E(f"  v_lshlrev_b32 v{X+j}, 16, v{X+j}")
layernorm(X, 17, 56)
E("  v_lshlrev_b32 v3, 2, v2")
for j in range(7):
    E(f"  ds_write_b32 v3, v{X+j} offset:{L_W4+256*j}")
E("  s_waitcnt lgkmcnt(0)")
E("  v_lshlrev_b32 v8, 2, v4")
for j in range(14):
    E(f"  ds_read_b32 v{160+j}, v8 offset:{L_W4+128*j}")
for e in range(8):
    E(f"  v_mov_b32 v{40+e}, 0")
stamp(8)
E("  s_waitcnt vmcnt(0) lgkmcnt(0)")
stamp(9)
for j in range(14):
    for p in range(4):
        E(f"  v_lshlrev_b32 v50, 16, v{64+4*j+p}")
        E(f"  v_and_b32 v51, 0xffff0000, v{64+4*j+p}")
        E(f"  v_fmac_f32 v{40+2*p}, v{160+j}, v50")
        E(f"  v_fmac_f32 v{40+2*p+1}, v{160+j}, v51")
E("  v_lshlrev_b32 v8, 6, v4")
E("  v_lshl_add_u32 v8, v5, 5, v8")
E(f"  ds_write_b128 v8, v[40:43] offset:{L_W4+2048}")
E(f"  ds_write_b128 v8, v[44:47] offset:{L_W4+2048+16}")
E("  s_waitcnt lgkmcnt(0)")
E("  v_and_b32 v8, 15, v2")
E("  v_lshrrev_b32 v9, 4, v2")
E("  v_lshlrev_b32 v9, 9, v9")
E("  v_lshl_add_u32 v8, v8, 2, v9")
for k in range(8):
    E(f"  ds_read_b32 v{40+k}, v8 offset:{L_W4+2048+64*k}")
E("  s_waitcnt lgkmcnt(0)")
for k in range(1, 8):
    E(f"  v_add_f32 v40, v40, v{40+k}")
E("  v_lshlrev_b32 v8, 2, v2")
E(f"  ds_write_b32 v8, v40 offset:{L_W4+4096}")
E("  s_waitcnt lgkmcnt(0)")
E("  v_and_b32 v8, 15, v2")
E("  v_lshlrev_b32 v8, 2, v8")
for k in range(4):
    E(f"  ds_read_b32 v{40+k}, v8 offset:{L_W4+4096+64*k}")
E("  s_waitcnt lgkmcnt(0)")
E("  v_add_f32 v40, v40, v41")
E("  v_add_f32 v42, v42, v43")
E("  v_add_f32 v40, v40, v42")
E("  v_cvt_pk_bf16_f32 v40, v40, v40")
E("  v_and_b32 v8, 15, v2")
E("  v_lshlrev_b32 v8, 1, v8")
E("  s_lshl_b32 s3, s2, 5")
E("  v_add_u32 v8, s3, v8")
E("  v_cmp_gt_u32 vcc, 16, v2")
E("  s_and_saveexec_b64 s[92:93], vcc")
E(f"  buffer_store_short v40, v8, s[20:23], 0 offen offset:{WS_Q} sc0 sc1")
E("  s_or_b64 exec, exec, s[92:93]")
E("  s_waitcnt vmcnt(0)")
E("  v_mov_b32 v60, 1")
E("  v_mov_b32 v6, 0")
E("  s_lshl_b32 s61, s90, 2")
E("  s_mov_b64 exec, 1")
E("  buffer_atomic_add v60, v6, s[40:43], s61 offen sc1")
E("  s_mov_b64 exec, -1")
E("  s_barrier")
stamp(10)
E("  v_mov_b32 v6, 0")
poll("P_Q", 40, "s61", 32, 10, 6, 60)
stamp(11)
E("  s_lshl_b32 s60, s90, 10")
E(f"  s_add_u32 s60, s60, {WS_Q}")
E("  v_lshlrev_b32 v8, 4, v2")
E("  buffer_load_dwordx4 v[40:43], v8, s[20:23], s60 offen sc0 sc1")
E("  s_waitcnt vmcnt(0)")
E(f"  ds_write_b128 v8, v[40:43] offset:{L_Q}")
E("  s_waitcnt lgkmcnt(0)")
E("  s_barrier")
E("END:")
E("  s_endpgm")

E('.section .rodata,"a"')
E(".p2align 6")
E(f".amdhsa_kernel {NAME}")
E("  .amdhsa_next_free_vgpr 212")
E("  .amdhsa_next_free_sgpr 96")
E("  .amdhsa_accum_offset 212")
E("  .amdhsa_group_segment_fixed_size 0")
E("  .amdhsa_kernarg_size 104")
E("  .amdhsa_user_sgpr_count 2")
E("  .amdhsa_user_sgpr_kernarg_segment_ptr 1")
E("  .amdhsa_system_sgpr_workgroup_id_x 1")
E(".end_amdhsa_kernel")
open(sys.argv[1], "w").write("\n".join(out) + "\n")
```
